```python
import torch

def _softmax(x, axis=-1):
    return torch.softmax(x, dim=axis)
def _gelu(x):
    return torch.nn.functional.gelu(x, approximate="tanh")
def _silu(x):
    return torch.nn.functional.silu(x)
def _sigmoid(x):
    return torch.sigmoid(x)
def _layernorm(x, axis=-1, eps=1e-5):
    m = x.mean(dim=axis, keepdim=True)
    v = x.var(dim=axis, keepdim=True, unbiased=False)
    return (x - m) / torch.sqrt(v + eps)
def _scatter_add(tgt, idx, src, axis=0):
    return tgt.clone().index_add_(axis, idx, src)
def _segment_sum(src, seg, n):
    out = torch.zeros((n,) + src.shape[1:], dtype=src.dtype)
    return out.index_add_(0, seg, src)
def _pad(x, pw):
    flat = tuple(v for pair in reversed(pw) for v in pair)
    return torch.nn.functional.pad(x, flat)

kernel_name = 'interleave_layers__ssm_conv_h3__dense_activation_relu__prompt'

def setup_inputs():

    _w = (lambda a: (lambda t: t.to(torch.bfloat16) if t.is_floating_point() else t)(torch.as_tensor(a)))
    def _A_setup():
        B, S, D = 1, 2048, 512
        ks = 4
        return {
            "q": _w((lambda *s: torch.randn(*s, dtype=torch.bfloat16) * 0.05)(B, S, D)),
            "k": _w((lambda *s: torch.randn(*s, dtype=torch.bfloat16) * 0.8)(B, S, D)),
            "v": _w((lambda *s: torch.randn(*s, dtype=torch.bfloat16) * 0.8)(B, S, D)),
            "shift_k": _w((lambda *s: torch.randn(*s, dtype=torch.bfloat16) * 0.8)(D, ks) * 0.5),
            "ssm_k": _w((lambda *s: torch.randn(*s, dtype=torch.bfloat16) * 0.8)(D, S) * (1.0 / S ** 0.5)),
            "ssm_D": _w((lambda *s: torch.randn(*s, dtype=torch.bfloat16) * 0.8)(D)),
        }
    _A_in = _A_setup()

    def _B_setup():
        B, S, D, Dff = 1, 2048, 512, 1376
        return {
            "x": _w((lambda *s: torch.randn(*s, dtype=torch.bfloat16) * 0.05)(B, S, D)),
            "w1": _w((lambda *s: torch.randn(*s, dtype=torch.bfloat16) * 0.1)(D, Dff)),
            "w2": _w((lambda *s: torch.randn(*s, dtype=torch.bfloat16) * 0.1)(Dff, D)),
        }
    _B_in = _B_setup()

    return {
        "A_q": _A_in["q"],
        "A_k": _A_in["k"],
        "A_v": _A_in["v"],
        "A_shift_k": _A_in["shift_k"],
        "A_ssm_k": _A_in["ssm_k"],
        "A_ssm_D": _A_in["ssm_D"],
        "B_x": _B_in["x"],
        "B_w1": _B_in["w1"],
        "B_w2": _B_in["w2"],
    }

def reference(A_q, A_k, A_v, A_shift_k, A_ssm_k, A_ssm_D, B_x, B_w1, B_w2):
    def _A_ref(q, k, v, shift_k, ssm_k, ssm_D):
        B, S, D = q.shape
        ks = shift_k.shape[-1]
        k_pad = _pad(k, ((0, 0), (ks - 1, 0), (0, 0)))
        k_shift = torch.zeros_like(k)
        for t in range(ks):
            k_shift = k_shift + k_pad[:, t:t + S, :] * shift_k[:, ks - 1 - t][None, None, :]
        kv = k_shift * v
        L = 2 * S
        kv_pad = _pad(kv, ((0, 0), (0, S), (0, 0)))
        kf_pad = _pad(ssm_k, ((0, 0), (0, S)))
        kv_f = (lambda x, axes=(-2,-1): torch.fft.rfft2(x.float(), dim=axes))(kv_pad[:, None, :, :], axes=(1, 2))
        kf_f = (lambda x, axes=(-2,-1): torch.fft.rfft2(x.float(), dim=axes))(kf_pad[:, None, :], axes=(1, 2))
        kf_f = (lambda x, *d: x.permute(*d))(kf_f, 1, 2, 0)
        y_f = kv_f * kf_f[None, :, :, :]
        y = (lambda x, s, axes=(-2,-1): torch.fft.irfft2(x, s=s, dim=axes).to(torch.bfloat16))(y_f, (1, L), axes=(1, 2))[:, 0, :S, :]
        y = y + kv * ssm_D[None, None, :]
        return q * y

    def _B_ref(x, w1, w2):
        h = torch.einsum("bsd,df->bsf", x, w1)
        zero = torch.zeros_like(h)
        h = torch.maximum(h, zero)
        return torch.einsum("bsf,fd->bsd", h, w2)

    x = A_q
    x = x + _A_ref(_layernorm(x, axis=-1), A_k, A_v, A_shift_k, A_ssm_k, A_ssm_D)
    x = x + _B_ref(_layernorm(x, axis=-1), B_w1, B_w2)
    x = x + _A_ref(_layernorm(x, axis=-1), A_k, A_v, A_shift_k, A_ssm_k, A_ssm_D)
    x = x + _B_ref(_layernorm(x, axis=-1), B_w1, B_w2)
    return x
```

```python
import re

REG_RE = re.compile(r'^(-?)(\|?)([vas])(?:(\d+)|\[(\d+):(\d+)\])(\|?)$')

def regs_of(tok):
    tok = tok.strip()
    if tok in ('vcc',):
        return {('s', 106), ('s', 107)}
    if tok == 'exec':
        return {('s', 126), ('s', 127)}
    if tok == 'm0':
        return {('s', 124)}
    m = REG_RE.match(tok)
    if not m:
        return set()
    f = m.group(3)
    if m.group(4) is not None:
        lo = hi = int(m.group(4))
    else:
        lo, hi = int(m.group(5)), int(m.group(6))
    return {(f, i) for i in range(lo, hi + 1)}

TRANS = ('v_exp_', 'v_log_', 'v_rcp_', 'v_rsq_', 'v_sqrt_', 'v_sin_', 'v_cos_')

class Ins:
    def __init__(self, text):
        self.text = text
        t = text.split(';')[0].strip()
        self.label = None
        self.op = None
        self.dst = set(); self.src = set()
        self.srcc = set(); self.srcab = set()
        self.kind = 'other'
        self.target = None
        if t.endswith(':'):
            self.label = t[:-1]; self.kind = 'label'; return
        if not t or t.startswith('.'):
            self.kind = 'none'; return
        parts = t.split(None, 1)
        op = parts[0]; self.op = op
        rest = parts[1] if len(parts) > 1 else ''
        ops = [o.strip() for o in rest.split(',')] if rest else []
        mods = ''
        clean = []
        for i, o in enumerate(ops):
            sp = o.split(None, 1)
            if not sp: continue
            clean.append(sp[0])
            if len(sp) > 1:
                mods = sp[1] + ',' + ','.join(ops[i + 1:])
                break
        self.ops = clean; self.mods = mods
        R = [regs_of(o) for o in clean]
        if op.startswith('v_mfma'):
            self.kind = 'mfma'
            self.dst = R[0]; self.srcab = R[1] | R[2]; self.srcc = R[3]; self.src = self.srcab | self.srcc
            if '16x16x32' in op: self.passes = 4; self.cls = 'xdl'
            elif '32x32x16' in op: self.passes = 8; self.cls = 'xdl'
            elif '16x16x4_f32' in op: self.passes = 8; self.cls = 'sgemm'
            elif '32x32x2_f32' in op: self.passes = 16; self.cls = 'sgemm'
            else: raise ValueError(op)
        elif op.startswith('v_'):
            self.kind = 'valu'
            if op.startswith('v_cmp'):
                self.dst = R[0]; self.src = set().union(*R[1:])
                if op.startswith('v_cmpx'): self.dst |= regs_of('exec')
            elif op.startswith('v_permlane') and 'swap' in op:
                self.dst = R[0] | R[1]; self.src = R[0] | R[1]
            elif op.startswith(('v_add_co', 'v_sub_co', 'v_addc_co', 'v_subb_co')):
                self.dst = R[0] | R[1]; self.src = set().union(*R[2:])
            else:
                self.dst = R[0]; self.src = set().union(*R[1:]) if len(R) > 1 else set()
                if op.startswith(('v_fmac', 'v_dot2c', 'v_writelane')) or '_dpp' in op or 'dpp' in mods or 'row_' in mods or 'wave_' in mods:
                    self.src |= R[0]
                if op.startswith('v_cndmask') and len(clean) == 3:
                    self.src |= regs_of('vcc')
            self.dpp = ('_dpp' in op) or ('row_' in mods) or ('wave_' in mods) or ('quad_perm' in mods)
            self.trans = op.startswith(TRANS)
        elif op.startswith(('buffer_', 'global_')):
            self.kind = 'vmem'
            self.lds = bool(re.search(r'\blds\b', mods))
            if op.startswith(('buffer_inv', 'buffer_wbl2')):
                pass
            elif 'load' in op and not self.lds:
                self.dst = R[0]; self.src = set().union(*R[1:])
                if 'd16' in op: self.src |= R[0]
            elif 'atomic' in op and 'sc0' in mods and op.startswith('global'):
                self.dst = R[0]; self.src = set().union(*R[1:])
            elif 'atomic' in op and 'sc0' in mods:
                self.dst = R[0]; self.src = set().union(*R)
            else:
                self.src = set().union(*R)
                if self.lds: self.src |= regs_of('m0')
            self.wide_store = ('store' in op) and (op.endswith('x4') or op.endswith('x3'))
            if self.wide_store:
                self.sdata = R[0] if op.startswith('buffer') else R[1]
        elif op.startswith('ds_'):
            self.kind = 'ds'
            if op.startswith(('ds_read', 'ds_bpermute', 'ds_permute', 'ds_swizzle')) or '_rtn' in op:
                self.dst = R[0]; self.src = set().union(*R[1:])
            else:
                self.src = set().union(*R)
        elif op.startswith(('s_load', 's_memtime', 's_memrealtime', 's_buffer_load')):
            self.kind = 'smem'
            self.dst = R[0]; self.src = set().union(*R[1:]) if len(R) > 1 else set()
        elif op.startswith(('s_cbranch', 's_branch')):
            self.kind = 'branch'; self.target = clean[0]
        elif op == 's_nop':
            self.kind = 'nop'; self.n = int(clean[0], 0) + 1
        elif op.startswith('s_'):
            self.kind = 'salu'
            if op.startswith(('s_cmp', 's_waitcnt', 's_barrier', 's_endpgm', 's_sleep', 's_setprio', 's_bitcmp')):
                self.src = set().union(*R) if R else set()
            else:
                self.dst = R[0] if R else set(); self.src = set().union(*R[1:]) if len(R) > 1 else set()
                if 'saveexec' in op: self.dst |= regs_of('exec')
        else:
            raise ValueError('unknown op: ' + text)

    def states(self):
        if self.kind in ('label', 'none'): return 0
        if self.kind == 'nop': return self.n
        return 1

def vg(s):
    return {r for r in s if r[0] in 'va'}
def sg(s):
    return {r for r in s if r[0] == 's'}

def need(p, c):
    n = 0
    if p.kind == 'valu':
        wv = vg(p.dst); ws = sg(p.dst)
        if c.kind == 'mfma' and wv & c.src: n = max(n, 2)
        if c.kind == 'mfma' and ws & regs_of('exec'): n = max(n, 4)
        if c.kind == 'valu':
            if c.dpp and wv & c.src: n = max(n, 2)
            if c.dpp and ws & regs_of('exec'): n = max(n, 5)
            if c.op.startswith(('v_readlane', 'v_readfirstlane')) and wv & c.src: n = max(n, 1)
            if c.op.startswith('v_permlane') and wv & c.src: n = max(n, 2)
            if c.op.startswith(('v_permlane', 'v_readlane', 'v_readfirstlane', 'v_writelane')) and ws & regs_of('exec'): n = max(n, 4)
            if ws & sg(c.src):
                n = max(n, 4 if c.op.startswith(('v_readlane', 'v_writelane')) else 2)
            if p.trans and wv & c.src: n = max(n, 1)
            if ('sdwa' in p.op or 'op_sel' in p.mods and not p.op.startswith('v_pk')) and wv & (c.src | c.dst): n = max(n, 1)
        if c.kind == 'vmem' and ws & sg(c.src): n = max(n, 5)
        if c.kind in ('salu', 'branch', 'smem') and ws & sg(c.src): n = max(n, 1)
    if p.kind == 'salu':
        if regs_of('m0') & p.dst and c.kind == 'vmem' and getattr(c, 'lds', False): n = max(n, 1)
    if p.kind == 'vmem' and getattr(p, 'wide_store', False):
        if vg(c.dst) & p.sdata: n = max(n, 2)
    if p.kind == 'mfma':
        idx = {2: 0, 4: 1, 8: 2, 16: 3}[p.passes]
        D = p.dst
        if p.cls == 'xdl':
            if c.kind == 'mfma':
                if c.srcc & D:
                    if c.cls == 'xdl' and c.srcc == D and c.passes == p.passes: n = max(n, [2, 0, 0, 0][idx])
                    else: n = max(n, [4, 6, 10, 18][idx])
                if c.srcab & D: n = max(n, [5, 8, 12, 20][idx])
                if c.dst & D and not (c.srcc & D): n = max(n, [5, 8, 12, 20][idx])
            elif c.kind in ('valu', 'vmem', 'ds') and (c.src | c.dst) & D: n = max(n, [5, 8, 12, 20][idx])
            if c.kind in ('valu', 'vmem', 'ds') and c.dst & p.srcc: n = max(n, [1, 3, 7, 15][idx])
        else:
            if c.kind == 'mfma':
                if c.srcc & D:
                    if c.cls == 'sgemm' and c.srcc == D: n = max(n, [2, 0, 0, 0][idx])
                    elif c.cls == 'sgemm': n = max(n, [2, 4, 8, 16][idx])
                if c.srcab & D: n = max(n, [4, 6, 10, 18][idx])
                if c.dst & D and not (c.srcc & D): n = max(n, [4, 6, 10, 18][idx])
            elif c.kind in ('valu', 'vmem', 'ds') and (c.src | c.dst) & D: n = max(n, [4, 6, 10, 18][idx])
    return n

LOOK = 22

def pad_hazards(lines):
    ins = [Ins(l) for l in lines]
    changed = True
    it = 0
    while changed:
        changed = False
        it += 1
        labels = {x.label: i for i, x in enumerate(ins) if x.label}
        preds = {}
        for i, x in enumerate(ins):
            if x.kind == 'branch' and x.target in labels:
                preds.setdefault(labels[x.target], []).append(i)
        out = []
        for ci, c in enumerate(ins):
            if c.kind in ('label', 'none', 'nop'):
                out.append(c); continue
            worst = 0
            stack = [(ci - 1, 0)]
            seen = set()
            while stack:
                i, dist = stack.pop()
                while i >= 0 and dist < LOOK:
                    if (i, dist) in seen: break
                    seen.add((i, dist))
                    p = ins[i]
                    if p.kind == 'label':
                        for b in preds.get(i, []):
                            stack.append((b, dist))
                        i -= 1; continue
                    if p.op in ('s_branch', 's_endpgm') and i != ci - 1 and False:
                        break
                    if p.kind not in ('none', 'nop'):
                        nn = need(p, c) - dist
                        if nn > worst: worst = nn
                    dist += p.states()
                    i -= 1
            if worst > 0:
                changed = True
                w = worst
                while w > 0:
                    k = min(w, 16)
                    out.append(Ins('s_nop %d' % (k - 1)))
                    w -= k
            out.append(c)
        ins = out
        assert it < 20
    return [x.text for x in ins]

class K:
    def __init__(self, name):
        self.name = name
        self.lines = []
        self.vm = []
        self.lg = []
        self.opt = False
        self.nlabel = 0
    def __call__(self, text, tag=None):
        for l in text.strip('\n').split('\n'):
            l = l.strip()
            if not l or l.startswith(';'): continue
            self.lines.append(l)
            op = l.split()[0]
            if op.startswith(('buffer_', 'global_')) and not op.startswith(('buffer_inv', 'buffer_wbl2')):
                self.vm.append((tag, self.opt))
            elif op.startswith('ds_'):
                self.lg.append((tag, self.opt))
            elif op.startswith(('s_load', 's_memtime', 's_memrealtime')):
                self.lg.append(('SMEM', self.opt))
    def label(self, base='L'):
        self.nlabel += 1
        return '%s_%s_%d' % (base, self.name, self.nlabel)
    def _count(self, q, tag):
        idx = max((i for i, (t, o) in enumerate(q) if t == tag), default=None)
        if idx is None: return None, q
        n = sum(1 for (t, o) in q[idx + 1:] if not o)
        return n, q[idx + 1:]
    def wait(self, vm=None, lg=None):
        parts = []
        if vm is not None:
            if vm == 0: n = 0; self.vm = []
            else: n, self.vm = self._count(self.vm, vm)
            if n is not None: parts.append('vmcnt(%d)' % min(n, 63))
        if lg is not None:
            if lg == 0 or any(t == 'SMEM' for t, o in self.lg): n = 0; self.lg = []
            else: n, self.lg = self._count(self.lg, lg)
            if n is not None: parts.append('lgkmcnt(%d)' % min(n, 15))
        if parts: self.lines.append('s_waitcnt ' + ' '.join(parts))
    def text(self, vgpr, agpr, sgpr=96):
        body = pad_hazards(self.lines)
        acc_off = (vgpr + 3) // 4 * 4
        nfv = acc_off + agpr if agpr else vgpr
        s = ['.text', '.globl %s' % self.name, '.p2align 8', '.type %s,@function' % self.name, '%s:' % self.name]
        s += [(l if l.endswith(':') else '    ' + l) for l in body]
        s += ['.section .rodata,"a"', '.p2align 6', '.amdhsa_kernel %s' % self.name,
              '  .amdhsa_next_free_vgpr %d' % nfv, '  .amdhsa_next_free_sgpr %d' % sgpr,
              '  .amdhsa_accum_offset %d' % acc_off, '  .amdhsa_group_segment_fixed_size 0',
              '  .amdhsa_kernarg_size 96', '  .amdhsa_user_sgpr_count 2',
              '  .amdhsa_user_sgpr_kernarg_segment_ptr 1', '  .amdhsa_system_sgpr_workgroup_id_x 1',
              '.end_amdhsa_kernel']
        for l in body:
            x = Ins(l)
            for (f, i) in x.dst | x.src:
                if f == 'v': assert i < vgpr, (l, vgpr)
                if f == 'a': assert i < agpr, (l, agpr)
                if f == 's' and i < 102: assert i < sgpr, (l, sgpr)
        return '\n'.join(s) + '\n'
```

```python
import sys
from asmlib import K

STAMP = '--stamp' in sys.argv
NAME = 'interleave_layers__ssm_conv_h3__dense_activation_relu__prompt'

YT   = 0x000000
W1F  = 0x200000
W2F  = 0x400000
CS8  = 0x600000
HF   = 0x800000
X1   = 0xE00000
R2   = 0x1000000
WS_USED = 0x1010000
STAMPS = 0x1100000
OOB = 0x7FFF0000

def srd(k, d, base, size, add=0):
    if add:
        k(f's_add_u32 s{d}, s{base}, {add}')
        k(f's_addc_u32 s{d+1}, s{base+1}, 0')
    else:
        k(f's_mov_b32 s{d}, s{base}')
        k(f's_mov_b32 s{d+1}, s{base+1}')
    k(f's_mov_b32 s{d+2}, {size}')
    k(f's_mov_b32 s{d+3}, 0x20000')

def stamp(k, which, sws, sdbg, vt0, vt1, st=90):
    if not STAMP: return
    k(f's_memrealtime s[{st}:{st+1}]')
    k(f's_lshr_b32 s{st+2}, s{sdbg}, 9')
    k(f's_and_b32 s{st+2}, s{st+2}, 7')
    k(f's_lshl_b32 s{st+2}, s{st+2}, 13')
    k(f's_lshl_b32 s{st+3}, s2, 5')
    k(f's_add_u32 s{st+2}, s{st+2}, s{st+3}')
    k(f's_add_u32 s{st+2}, s{st+2}, {STAMPS + which*8}')
    k('s_waitcnt lgkmcnt(0)')
    k(f'v_mov_b32 v{vt0}, s{st}')
    k(f'v_mov_b32 v{vt0+1}, s{st+1}')
    k(f'v_mov_b32 v{vt1}, s{st+2}')
    k.opt = True
    k(f'global_store_dwordx2 v{vt1}, v[{vt0}:{vt0+1}], s[{sws}:{sws+1}]')
    k.opt = False

def load_kernargs(k):
    k('s_load_dwordx16 s[16:31], s[0:1], 0')
    k('s_load_dwordx8 s[32:39], s[0:1], 64')
Q_, K_, V_, SHK_, SSMK_, SSMD_, BX_, W1_, W2_, OUT_, DBG_, WS_ = 16, 18, 20, 22, 24, 26, 28, 30, 32, 34, 36, 38

def gen_kc():
    k = K('kc_kernel')
    U0, US, HB, HC, HR = 0, 4608, 9216, 33280, 4160
    end = 'kc_end'
    k('s_cmp_ge_u32 s2, 256')
    k(f's_cbranch_scc1 {end}')
    load_kernargs(k)
    k('s_and_b32 s3, s2, 7')
    k('s_lshl_b32 s3, s3, 5')
    k('s_lshr_b32 s5, s2, 3')
    k('s_add_u32 s3, s3, s5')
    k('v_lshrrev_b32 v2, 6, v0')
    k('v_readfirstlane_b32 s4, v2')
    k('v_and_b32 v1, 63, v0')
    k('v_and_b32 v2, 15, v0')
    k('v_bfe_u32 v3, v0, 4, 2')
    k('s_lshl_b32 s5, s3, 2')
    k('v_lshl_add_u32 v4, v0, 10, s5')
    k('s_lshl_b32 s6, s4, 16')
    k('s_add_u32 s6, s6, s5')
    k('s_sub_u32 s7, s6, 3072')
    k(f's_add_u32 s8, s6, {253*1024}')
    k('v_cmp_eq_u32 vcc, 0, v1')
    k(f'v_mov_b32 v7, {OOB}')
    k('v_mov_b32 v5, s7')
    k('v_mov_b32 v6, s8')
    k('v_cndmask_b32 v5, v7, v5, vcc')
    k('v_cndmask_b32 v6, v7, v6, vcc')
    k('s_lshl_b32 s6, s3, 13')
    k('v_lshl_add_u32 v9, v0, 4, s6')
    k('v_subrev_u32 v8, 16, v9')
    k('v_cmp_eq_u32 vcc, 0, v0')
    k('v_cndmask_b32 v8, v8, v7, vcc')
    k.wait(lg=0)
    stamp(k, 0, WS_, DBG_, 250, 252)
    srd(k, 40, K_, 2097152); srd(k, 44, V_, 2097152); srd(k, 48, SSMK_, 2097152)
    k('s_lshl_b32 s6, s3, 4')
    k('s_load_dwordx4 s[68:71], s[22:23], s6')
    k('s_load_dword s72, s[26:27], s5')
    k('s_mov_b32 s9, 4096')
    for c in range(2):
        d = 56 + 8 * c
        so = 's9' if c else '0'
        k(f'buffer_load_dwordx4 v[{d}:{d+3}], v8, s[48:51], {so} offen', tag='h')
        k(f'buffer_load_dwordx4 v[{d+4}:{d+7}], v9, s[48:51], {so} offen', tag='h')
    k('s_mov_b32 s10, 0')
    for j in range(8):
        r = 16 + 5 * j
        k(f'buffer_load_dword v{r}, v4, s[40:43], s10 offen', tag=f'kv{j}')
        k(f'buffer_load_dword v{r+4}, v4, s[44:47], s10 offen', tag=f'kv{j}')
        hv, so = ('v5', '0') if j == 0 else ('v6', 's11')
        for m in range(3):
            k(f'buffer_load_dword v{r+1+m}, {hv}, s[40:43], {so} offen offset:{2048-1024*m}', tag=f'kv{j}')
        k('s_mov_b32 s11, s10')
        k('s_add_u32 s10, s10, 262144')
    srd(k, 52, WS_, WS_USED); srd(k, 60, Q_, 2097152); srd(k, 64, OUT_, 2097152)
    k('s_lshl_b32 s13, s4, 8')
    k('s_add_u32 s13, s13, s2')
    k('s_cmp_ge_u32 s13, 344')
    k('s_cselect_b32 s12, 1, 0')
    k('s_cselect_b32 s56, s32, s30')
    k('s_cselect_b32 s57, s33, s31')
    k(f's_mov_b32 s58, {512*1376*2}')
    k('s_mov_b32 s59, 0x20000')
    k('s_mov_b32 s73, 2752')
    k('s_cselect_b32 s74, 4, s73')
    k('s_mov_b32 s75, 1020')
    k('s_cselect_b32 s75, s75, s73')
    k('s_mov_b32 s76, 68800')
    k('s_cselect_b32 s76, s75, s76')
    k('s_mov_b32 s77, 8192')
    k(f's_mov_b32 s78, {8*2752}')
    k('s_cselect_b32 s77, s77, s78')
    k('s_cselect_b32 s78, 3, 2')
    k('s_cselect_b32 s14, 344, 0')
    k('s_sub_u32 s13, s13, s14')
    k('s_lshr_b32 s14, s13, 3')
    k('s_and_b32 s15, s13, 7')
    k(f's_mul_i32 s79, s15, {64*2752}')
    k('s_lshl_b32 s80, s14, 6')
    k('s_add_u32 s79, s79, s80')
    k('s_lshl_b32 s80, s14, 15')
    k('s_lshl_b32 s81, s15, 7')
    k('s_add_u32 s80, s80, s81')
    k('s_cmp_eq_u32 s12, 1')
    k('s_cselect_b32 s79, s80, s79')
    k('s_cmp_ge_u32 s13, 344')
    k('s_cselect_b32 s12, 2, s12')
    k(f's_cselect_b32 s79, {OOB}, s79')
    k('v_mul_lo_u32 v10, v3, s77')
    k('v_lshlrev_b32 v11, s78, v2')
    k('v_add3_u32 v10, v10, v11, s79')
    k('s_mov_b32 s10, 0')
    for n in range(16):
        k(f'buffer_load_dword v{160+n}, v10, s[56:59], s10 offen', tag='job')
        if n < 15:
            inc = 's76' if n == 7 else ('s74' if n % 2 == 0 else 's75')
            k(f's_add_u32 s10, s10, {inc}')
    k('s_lshl_b32 s6, s2, 13')
    k('v_lshl_add_u32 v12, v0, 4, s6')
    k('buffer_load_dwordx4 v[204:207], v12, s[60:63], 0 offen', tag='q')
    k('buffer_load_dwordx4 v[208:211], v12, s[60:63], s9 offen', tag='q')
    for i in range(4): k(f'v_mov_b32 v{144+i}, 0')
    k('v_and_b32 v13, 31, v0')
    k('v_lshlrev_b32 v13, 4, v13')
    k(f'ds_write_b128 v13, v[144:147] offset:{U0}')
    k(f'ds_write_b128 v13, v[144:147] offset:{U0+US}')
    k(f's_mov_b32 s6, {HR}')
    k('v_mul_lo_u32 v13, v2, s6')
    k(f'ds_write_b128 v13, v[144:147] offset:{HB}')
    k('v_lshlrev_b32 v13, 4, v0')
    k(f'v_add_u32 v14, {HB+16+HC}, v13')
    k(f'v_add_u32 v13, {HB+16}, v13')
    k.wait(vm='h')
    for c in range(2):
        d = 56 + 8 * c
        E, O, P = 72, 78, 84
        a = f'v{13+c}'
        for i in range(6): k(f'v_mov_b32 v{E+i}, v{d+1+i}')
        for i in range(6): k(f'v_alignbit_b32 v{O+i}, v{d+i+1}, v{d+i}, 16')
        for i in range(6): k(f'v_alignbit_b32 v{P+i}, v{d+i+2}, v{d+i+1}, 16')
        src = {1: O, 2: E, 3: P, 4: d + 2, 5: O + 2, 6: E + 2, 7: P + 2, 8: d + 4}
        for sg in range(1, 9):
            s = src[sg]
            k(f'ds_write_b128 {a}, v[{s}:{s+3}] offset:{(sg-1)*HR}')
        if c == 0: k.wait(lg=0)
    k.wait(lg=0)
    k('s_lshl_b32 s82, s68, 16'); k('s_lshl_b32 s83, s70, 16')
    k('s_and_b32 s84, s68, 0xffff0000'); k('s_and_b32 s85, s70, 0xffff0000')
    k('s_lshl_b32 s86, s69, 16'); k('s_lshl_b32 s87, s71, 16')
    k('s_and_b32 s88, s69, 0xffff0000'); k('s_and_b32 s89, s71, 0xffff0000')
    k('s_lshr_b32 s68, s4, 1')
    k('s_and_b32 s69, s4, 1')
    k('s_lshl_b32 s70, s72, 16')
    k('s_and_b32 s71, s72, 0xffff0000')
    k('s_cmp_eq_u32 s68, 1')
    k('s_cselect_b32 s72, s71, s70')
    k('s_mov_b32 s73, 0xffff0000')
    k('s_barrier')
    k('v_and_b32 v13, 7, v0')
    k('v_mul_lo_u32 v13, v13, s6')
    k('v_lshrrev_b32 v14, 3, v2')
    k('v_sub_u32 v14, v14, v3')
    k('v_lshl_add_u32 v13, v14, 4, v13')
    k(f's_mul_i32 s70, s68, {HC}')
    k('s_lshl_b32 s71, s69, 9')
    k('s_add_u32 s70, s70, s71')
    k(f's_add_u32 s70, s70, {HB + 48 - 512}')
    k('v_add_u32 v13, s70, v13')
    for ip in range(8):
        for rho in range(8):
            a = 4 * (8 * ip + rho)
            k(f'ds_read_b128 a[{a}:{a+3}], v13 offset:{512*ip + 64*rho}')
    k(f's_mul_i32 s70, s68, {US}')
    k('v_lshlrev_b32 v14, 5, v2')
    k('v_lshl_add_u32 v14, v3, 4, v14')
    k(f's_add_u32 s74, s70, {U0+32}')
    k('v_add_u32 v14, s74, v14')
    k('v_xor_b32 v15, 7, v0')
    k('v_lshlrev_b32 v15, 1, v15')
    k('v_lshlrev_b32 v90, 5, v2')
    k('v_xor_b32 v91, 1, v3')
    k('v_lshl_add_u32 v90, v91, 3, v90')
    k('s_add_u32 s74, s70, s71')
    k(f's_add_u32 s74, s74, {U0+512}')
    k('v_add_u32 v90, s74, v90')
    k('v_lshlrev_b32 v91, 5, v2')
    k('v_lshl_add_u32 v91, v3, 3, v91')
    k('s_lshl_b32 s74, s3, 1')
    k('s_add_u32 s74, s74, s68')
    k('s_lshl_b32 s74, s74, 12')
    k('s_add_u32 s74, s74, s71')
    k(f's_add_u32 s74, s74, {YT}')
    k('v_add_u32 v91, s74, v91')
    first = [True] * 4
    for j in range(8):
        r = 16 + 5 * j
        k.wait(vm=f'kv{j}')
        T = 144
        k(f'v_mov_b32_dpp v{r+1}, v{r} wave_shr:1 row_mask:0xf bank_mask:0xf')
        k(f'v_lshlrev_b32 v{T}, 16, v{r}'); k(f'v_and_b32 v{T+1}, s73, v{r}')
        k(f'v_mov_b32_dpp v{r+2}, v{r+1} wave_shr:1 row_mask:0xf bank_mask:0xf')
        k(f'v_lshlrev_b32 v{T+2}, 16, v{r+1}'); k(f'v_and_b32 v{T+3}, s73, v{r+1}')
        k(f'v_mov_b32_dpp v{r+3}, v{r+2} wave_shr:1 row_mask:0xf bank_mask:0xf')
        k(f'v_lshlrev_b32 v{T+4}, 16, v{r+2}'); k(f'v_and_b32 v{T+5}, s73, v{r+2}')
        k(f'v_lshlrev_b32 v{T+6}, 16, v{r+3}'); k(f'v_and_b32 v{T+7}, s73, v{r+3}')
        k(f'v_lshlrev_b32 v{T+8}, 16, v{r+4}'); k(f'v_and_b32 v{T+9}, s73, v{r+4}')
        k(f'v_pk_mul_f32 v[{T}:{T+1}], v[{T}:{T+1}], s[82:83]')
        k(f'v_pk_fma_f32 v[{T}:{T+1}], v[{T+2}:{T+3}], s[84:85], v[{T}:{T+1}]')
        k(f'v_pk_fma_f32 v[{T}:{T+1}], v[{T+4}:{T+5}], s[86:87], v[{T}:{T+1}]')
        k(f'v_pk_fma_f32 v[{T}:{T+1}], v[{T+6}:{T+7}], s[88:89], v[{T}:{T+1}]')
        k(f'v_pk_mul_f32 v[{T}:{T+1}], v[{T}:{T+1}], v[{T+8}:{T+9}]')
        k(f'v_cvt_pk_bf16_f32 v{T+10}, v{T}, v{T+1}')
        k(f'ds_write_b16 v15, v{T+10} offset:{U0+512+512*j}')
        k(f'ds_write_b16_d16_hi v15, v{T+10} offset:{U0+US+512+512*j}')
        k.wait(lg=0)
        k('s_barrier')
        for rho in range(8):
            k(f'ds_read_b128 v[{96+4*rho}:{99+4*rho}], v14 offset:{512*j + 64*(7-rho)}', tag=f'b{rho}')
        if j % 2 == 1:
            k(f'ds_read_b64 v[{T+12}:{T+13}], v90 offset:{1024*((j-1)//2)}', tag='kvr')
        taus = [t for t in range(4) if 2 * t - j >= 0]
        def mm(tau, rho):
            ip = 2 * tau - j + 1
            a = 4 * (8 * ip + rho)
            acc = 128 + 4 * tau
            c = f'v[{acc}:{acc+3}]'
            if j == 0 and rho == 0: c = '0'
            k(f'v_mfma_f32_16x16x32_bf16 v[{acc}:{acc+3}], a[{a}:{a+3}], v[{96+4*rho}:{99+4*rho}], {c}')
        if j % 2 == 1:
            k.wait(lg=0)
            sk = k.label('skip')
            k('s_cmp_eq_u32 s69, 0')
            k(f's_cbranch_scc1 {sk}')
            for rho in range(8): mm((j - 1) // 2, rho)
            k(f'{sk}:')
            for rho in range(8):
                for tau in taus: mm(tau, rho)
            tau = (j - 1) // 2
            acc = 128 + 4 * tau
            k(f'v_and_b32 v{T}, s73, v{T+13}')
            k(f'v_lshlrev_b32 v{T+1}, 16, v{T+13}')
            k(f'v_and_b32 v{T+2}, s73, v{T+12}')
            k(f'v_lshlrev_b32 v{T+3}, 16, v{T+12}')
            for rr in range(4): k(f'v_fma_f32 v{T+rr}, v{T+rr}, s72, v{acc+rr}')
            k(f'v_cvt_pk_bf16_f32 v{T+14}, v{T}, v{T+1}')
            k(f'v_cvt_pk_bf16_f32 v{T+15}, v{T+2}, v{T+3}')
            k(f'buffer_store_dwordx2 v[{T+14}:{T+15}], v91, s[52:55], 0 offen offset:{1024*tau}', tag='yst')
        else:
            for rho in range(8):
                k.wait(lg=f'b{rho}')
                for tau in taus: mm(tau, rho)
    k.wait(vm='q')
    k('buffer_store_dwordx4 v[204:207], v12, s[64:67], 0 offen')
    k('buffer_store_dwordx4 v[208:211], v12, s[64:67], s9 offen')
    k('s_mov_b32 s74, 0x05040100')
    k('s_mov_b32 s75, 0x07060302')
    k('v_lshlrev_b32 v10, 4, v1')
    k('s_cmp_eq_u32 s12, 2')
    k('s_cbranch_scc1 kc_done')
    k('s_cmp_eq_u32 s12, 1')
    k('s_cbranch_scc1 kc_w2job')
    for i in range(4): k(f'v_mov_b32 v{200+i}, 0x3f803f80')
    for par in range(2):
        for ksl in range(2):
            f = 176 + 4 * (2 * par + ksl)
            for d in range(4):
                k(f'v_perm_b32 v{f+d}, v{160+8*ksl+2*d+1}, v{160+8*ksl+2*d}, s{74+par}')
    k('s_lshl_b32 s76, s14, 15')
    k('s_lshl_b32 s77, s15, 11')
    k('s_add_u32 s76, s76, s77')
    k(f's_add_u32 s76, s76, {W1F}')
    k('s_add_u32 s77, s76, 16384')
    for par in range(2):
        for ksl in range(2):
            f = 176 + 4 * (2 * par + ksl)
            k(f'buffer_store_dwordx4 v[{f}:{f+3}], v10, s[52:55], s{76+par} offen offset:{1024*ksl}')
            c = '0' if ksl == 0 else f'v[{192+4*par}:{195+4*par}]'
            k(f'v_mfma_f32_16x16x32_bf16 v[{192+4*par}:{195+4*par}], v[{f}:{f+3}], v[200:203], {c}')
    k(f's_mul_i32 s76, s15, {86*64}')
    k('s_lshl_b32 s77, s14, 7')
    k('s_add_u32 s76, s76, s77')
    k(f's_add_u32 s76, s76, {CS8}')
    k('v_lshlrev_b32 v11, 4, v3')
    k('buffer_store_dwordx4 v[192:195], v11, s[52:55], s76 offen')
    k('buffer_store_dwordx4 v[196:199], v11, s[52:55], s76 offen offset:64')
    k('s_branch kc_done')
    k('kc_w2job:')
    pairs = [(0, 2), (4, 6), (1, 3), (5, 7)]
    for u in range(4):
        f = 176 + 4 * u
        for d in range(4):
            e0, e1 = pairs[d]
            k(f'v_perm_b32 v{f+d}, v{160+2*e1+(u>>1)}, v{160+2*e0+(u>>1)}, s{74+(u&1)}')
    k('s_mul_i32 s76, s15, 43')
    k('s_add_u32 s76, s76, s14')
    k('s_lshl_b32 s76, s76, 12')
    k(f's_add_u32 s76, s76, {W2F}')
    for u in range(4):
        f = 176 + 4 * u
        k(f'buffer_store_dwordx4 v[{f}:{f+3}], v10, s[52:55], s76 offen offset:{1024*u}')
    k('kc_done:')
    if STAMP: k('s_waitcnt vmcnt(0)')
    stamp(k, 1, WS_, DBG_, 250, 252)
    k(f'{end}:')
    k('s_endpgm')
    return k.text(256, 256, 96), 75776

def wg_map(k):
    k('s_and_b32 s3, s2, 7')
    k('s_lshl_b32 s3, s3, 2')
    k('s_lshr_b32 s5, s2, 6')
    k('s_add_u32 s3, s3, s5')
    k('s_bfe_u32 s5, s2, 0x30003')
    k('v_lshrrev_b32 v2, 6, v0')
    k('v_readfirstlane_b32 s4, v2')
    k('v_and_b32 v1, 63, v0')
    k('v_and_b32 v2, 15, v0')
    k('v_bfe_u32 v3, v0, 4, 2')

def gen_k1():
    k = K('k1_kernel')
    YL, XA, ST = 0, 65536, 131072
    k('s_cmp_ge_u32 s2, 256')
    k('s_cbranch_scc1 k1_end')
    k('s_load_dwordx8 s[32:39], s[0:1], 64')
    wg_map(k)
    k('s_lshl_b32 s6, s3, 6')
    k('s_lshl_b32 s7, s4, 4')
    k('s_add_u32 s6, s6, s7')
    k('v_add_u32 v4, s6, v2')
    k('v_lshlrev_b32 v5, 10, v4')
    k('v_lshl_add_u32 v5, v3, 4, v5')
    k('v_lshrrev_b32 v6, 3, v1')
    k('v_lshlrev_b32 v6, 12, v6')
    k('v_and_b32 v7, 7, v1')
    k('v_and_b32 v8, 1, v3')
    k('v_lshlrev_b32 v8, 1, v8')
    k('v_xor_b32 v7, v7, v8')
    k('v_xor_b32 v8, 4, v7')
    k('v_lshl_add_u32 v7, v7, 4, v6')
    k('v_lshl_add_u32 v8, v8, 4, v6')
    k('s_lshl_b32 s8, s4, 19')
    k('s_lshl_b32 s9, s3, 7')
    k('s_add_u32 s8, s8, s9')
    if YT: k(f's_add_u32 s8, s8, {YT}')
    k('s_lshl_b32 s9, s4, 14')
    k('s_mul_i32 s10, s5, 11')
    k('s_mul_i32 s11, s4, 3')
    k('s_add_u32 s10, s10, s11')
    k('v_lshlrev_b32 v9, 4, v1')
    for t in range(3):
        k(f's_add_u32 s12, s10, {t}')
        k(f's_add_u32 s13, s11, {t}')
        k('s_cmp_lt_u32 s12, 86')
        k('s_cselect_b32 s14, 1, 0')
        k('s_cmp_lt_u32 s13, 11')
        k('s_cselect_b32 s14, s14, 0')
        k('s_lshl_b32 s15, s12, 14')
        k(f's_add_u32 s15, s15, {W1F}')
        k('s_lshl_b32 s16, s12, 6')
        k(f's_add_u32 s16, s16, {CS8}')
        k(f's_mul_i32 s17, s3, {4*43}')
        k('s_lshr_b32 s18, s12, 1')
        k('s_add_u32 s17, s17, s18')
        k('s_lshl_b32 s17, s17, 10')
        k('s_and_b32 s18, s12, 1')
        k('s_lshl_b32 s18, s18, 3')
        k('s_add_u32 s17, s17, s18')
        k(f's_add_u32 s17, s17, {HF}')
        k('s_cmp_eq_u32 s14, 1')
        k(f's_cselect_b32 s15, s15, {OOB}')
        k(f's_cselect_b32 s16, s16, {OOB}')
        k(f's_cselect_b32 s17, s17, {OOB}')
        k(f'v_add_u32 v{10+t}, s15, v9')
        k(f'v_add_u32 v{13+t}, s17, v9')
        k(f'v_mov_b32 v{154+t}, s16')
    k(f's_mov_b32 s12, {86*64}')
    k('v_mul_lo_u32 v157, v3, s12')
    k('v_lshl_add_u32 v157, v2, 2, v157')
    for t in range(3): k(f'v_add_u32 v{154+t}, v{154+t}, v157')
    k.wait(lg=0)
    stamp(k, 0, WS_, DBG_, 250, 252)
    srd(k, 40, OUT_, 2097152); srd(k, 44, WS_, WS_USED)
    X = 16
    for ks in range(16):
        k(f'buffer_load_dwordx4 v[{X+4*ks}:{X+4*ks+3}], v5, s[40:43], 0 offen offset:{64*ks}', tag=f'x{ks}')
    k('s_mov_b32 m0, s9')
    for n in range(16):
        k(f'buffer_load_dwordx4 v{7+(n&1)}, s[44:47], s8 offen lds', tag='y')
        if n < 15:
            k('s_add_u32 m0, m0, 1024')
            k('s_add_u32 s8, s8, 32768')
    k(f's_mov_b32 s12, {4*86*64}')
    for t in range(3):
        k(f'buffer_load_dword v{148+2*t}, v{154+t}, s[44:47], 0 offen', tag='cs')
        k(f'buffer_load_dword v{149+2*t}, v{154+t}, s[44:47], s12 offen', tag='cs')
    k('s_mov_b32 s20, 0'); k('s_mov_b32 s21, 4096'); k('s_mov_b32 s22, 8192'); k('s_mov_b32 s23, 12288')
    def wload(ks):
        for t in range(3):
            a = 4 * (3 * ks + t)
            k(f'buffer_load_dwordx4 a[{a}:{a+3}], v{10+t}, s[44:47], s{20+(ks>>2)} offen offset:{1024*(ks&3)}', tag=f'w{ks}')
    for ks in range(8): wload(ks)
    ONES, SEL, S1, Q1, S2, Q2 = 128, 132, 120, 124, 208, 212
    for i in range(4): k(f'v_mov_b32 v{ONES+i}, 0x3f803f80')
    k('v_lshlrev_b32 v96, 2, v3')
    k('v_sub_u32 v96, v2, v96')
    for r in range(4):
        k(f'v_cmp_eq_u32 vcc, {r}, v96')
        k(f'v_cndmask_b32 v{SEL+r}, 0, 1.0, vcc')
    k('v_mov_b32 v158, 1.0')
    k('v_lshrrev_b32 v96, 2, v2')
    k('v_lshl_add_u32 v97, v3, 3, v96')
    k('v_lshlrev_b32 v97, 7, v97')
    k('v_lshrrev_b32 v96, 1, v96')
    k('v_and_b32 v98, 1, v3')
    k('v_lshl_or_b32 v96, v98, 1, v96')
    k('v_xor_b32 v96, s4, v96')
    k('v_lshl_add_u32 v97, v96, 5, v97')
    k('v_and_b32 v98, 3, v1')
    k('v_lshl_add_u32 v159, v98, 3, v97')
    k('s_lshl_b32 s12, s4, 14')
    k(f's_add_u32 s12, s12, {XA}')
    k('v_add_u32 v216, s12, v9')
    k(f'v_add_u32 v217, {XA}, v9')
    k('s_mov_b32 s24, 0xffff0000')
    for ks in range(16):
        k.wait(vm=f'x{ks}')
        x = f'v[{X+4*ks}:{X+4*ks+3}]'
        c1 = '0' if ks == 0 else f'v[{S1}:{S1+3}]'
        c2 = '0' if ks == 0 else f'v[{Q1}:{Q1+3}]'
        k(f'v_mfma_f32_16x16x32_bf16 v[{S1}:{S1+3}], v[{ONES}:{ONES+3}], {x}, {c1}')
        k(f'v_mfma_f32_16x16x32_bf16 v[{Q1}:{Q1+3}], {x}, {x}, {c2}')
    for ks in range(8, 16): wload(ks)
    def stats(S, Q, outp):
        k(f'v_mul_f32 v96, v{Q}, v{SEL}')
        for r in range(1, 4): k(f'v_fmac_f32 v96, v{Q+r}, v{SEL+r}')
        k(f'v_mfma_f32_16x16x4_f32 v[100:103], v158, v96, 0')
        k(f'v_mul_f32 v{outp+2}, 0x3b000000, v{S}')
        k(f'v_mul_f32 v97, v{outp+2}, v{outp+2}')
        k('s_mov_b32 s25, 0x3b000000')
        k(f'v_fma_f32 v97, v100, s25, -v97')
        k('v_max_f32 v97, 0, v97')
        k('v_add_f32 v97, 0x3727c5ac, v97')
        k(f'v_rsq_f32 v{outp}, v97')
        k(f'v_mul_f32 v{outp+1}, -v{outp+2}, v{outp}')
    P1 = 220
    stats(S1, Q1, P1)
    k.wait(vm='cs')
    for t in range(3):
        k(f'v_mfma_f32_16x16x4_f32 v[{136+4*t}:{139+4*t}], v{148+2*t}, v158, 0')
        k(f'v_mfma_f32_16x16x4_f32 v[{136+4*t}:{139+4*t}], v{149+2*t}, v158, v[{136+4*t}:{139+4*t}]')
    k('s_barrier')
    def yread(ks):
        y = 80 + 4 * (ks & 3)
        k(f'ds_read_b64_tr_b16 v[{y}:{y+1}], v159 offset:{YL+4096*ks}', tag=f'y{ks}')
        k(f'ds_read_b64_tr_b16 v[{y+2}:{y+3}], v159 offset:{YL+4096*ks+512}', tag=f'y{ks}')
    for ks in range(3): yread(ks)
    for ks in range(16):
        if ks + 3 < 16: yread(ks + 3)
        k.wait(lg=f'y{ks}')
        y = 80 + 4 * (ks & 3)
        o = 112 + 4 * (ks & 1)
        for d in range(4):
            T = 96 + 6 * (d & 1)
            xr = X + 4 * ks + d
            k(f'v_lshlrev_b32 v{T}, 16, v{xr}'); k(f'v_and_b32 v{T+1}, s24, v{xr}')
            k(f'v_lshlrev_b32 v{T+2}, 16, v{y+d}'); k(f'v_and_b32 v{T+3}, s24, v{y+d}')
            k(f'v_pk_fma_f32 v[{T+4}:{T+5}], v[{T}:{T+1}], v[{P1}:{P1+1}], v[{P1}:{P1+1}] op_sel:[0,0,1] op_sel_hi:[1,0,1]')
            k(f'v_pk_fma_f32 v[{T+4}:{T+5}], v[{T+4}:{T+5}], v[{T+2}:{T+3}], v[{T}:{T+1}]')
            k(f'v_cvt_pk_bf16_f32 v{o+d}, v{T+4}, v{T+5}')
        k(f'ds_write_b128 v216, v[{o}:{o+3}] offset:{1024*ks}', tag=f'xw{ks}')
        x = f'v[{o}:{o+3}]'
        c1 = '0' if ks == 0 else f'v[{S2}:{S2+3}]'
        c2 = '0' if ks == 0 else f'v[{Q2}:{Q2+3}]'
        k(f'v_mfma_f32_16x16x32_bf16 v[{S2}:{S2+3}], v[{ONES}:{ONES+3}], {x}, {c1}')
        k(f'v_mfma_f32_16x16x32_bf16 v[{Q2}:{Q2+3}], {x}, {x}, {c2}')
    P2 = 224
    k(f'v_mul_f32 v104, 0xbb000000, v{S2}')
    k('s_lshl_b32 s12, s4, 6')
    k(f's_add_u32 s12, s12, {ST}')
    k('v_lshl_add_u32 v105, v2, 2, s12')
    k('ds_write_b32 v105, v104')
    k('s_lshl_b32 s12, s5, 11')
    k('v_add_u32 v105, s12, v216')
    k('ds_read_b128 v[80:83], v105', tag='xs')
    k('ds_read_b128 v[84:87], v105 offset:1024', tag='xs')
    stats(S2, Q2, P2)
    k('s_lshl_b32 s12, s5, 7')
    k(f's_add_u32 s12, s12, {X1}')
    k.wait(lg=0)
    k('s_barrier')
    k('buffer_store_dwordx4 v[80:83], v5, s[44:47], s12 offen', tag='st')
    k('buffer_store_dwordx4 v[84:87], v5, s[44:47], s12 offen offset:64', tag='st')
    k('v_lshlrev_b32 v105, 2, v4')
    k(f's_mov_b32 s12, {R2}')
    k(f'buffer_store_dword v{P2}, v105, s[44:47], s12 offen', tag='st')
    k(f'v_lshlrev_b32 v105, 2, v2')
    k(f'v_add_u32 v105, {ST}, v105')
    for m in range(4): k(f'ds_read_b32 v{228+2*m}, v105 offset:{64*m}', tag='m2')
    def xread(ks):
        for m in range(4):
            b = 16 + 16 * (ks & 1) + 4 * m
            k(f'ds_read_b128 v[{b}:{b+3}], v217 offset:{16384*m+1024*ks}', tag=f'xa{ks}')
    xread(0)
    k.wait(lg='m2')
    ACC = 160
    for t in range(3):
        for m in range(4):
            a = ACC + 4 * (4 * t + m)
            for h in range(2):
                k(f'v_pk_mul_f32 v[{a+2*h}:{a+2*h+1}], v[{136+4*t+2*h}:{137+4*t+2*h}], v[{228+2*m}:{229+2*m}] op_sel_hi:[1,0]')
    for ks in range(16):
        if ks + 1 < 16: xread(ks + 1)
        k.wait(vm=f'w{ks}', lg=f'xa{ks}')
        for m in range(4):
            b = 16 + 16 * (ks & 1) + 4 * m
            for t in range(3):
                a = ACC + 4 * (4 * t + m)
                w = 4 * (3 * ks + t)
                k(f'v_mfma_f32_16x16x32_bf16 v[{a}:{a+3}], a[{w}:{w+3}], v[{b}:{b+3}], v[{a}:{a+3}]')
    for m in range(4): k(f's_mov_b32 s{20+m}, {m*43*1024}')
    for m in range(4):
        for t in range(3):
            a = ACC + 4 * (4 * t + m)
            o = 48 + 2 * (3 * m + t)
            k(f'v_cvt_pk_bf16_f32 v{o}, v{a}, v{a+1}')
            k(f'v_cvt_pk_bf16_f32 v{o+1}, v{a+2}, v{a+3}')
            k(f'v_pk_max_i16 v{o}, v{o}, 0')
            k(f'v_pk_max_i16 v{o+1}, v{o+1}, 0')
            k(f'buffer_store_dwordx2 v[{o}:{o+1}], v{13+t}, s[44:47], s{20+m} offen')
    if STAMP: k('s_waitcnt vmcnt(0)')
    stamp(k, 1, WS_, DBG_, 250, 252)
    k('k1_end:')
    k('s_endpgm')
    return k.text(256, 192, 96), 131072 + 256

def gen_k2():
    k = K('k2_kernel')
    k('s_cmp_ge_u32 s2, 256')
    k('s_cbranch_scc1 k2_end')
    k('s_load_dwordx8 s[32:39], s[0:1], 64')
    wg_map(k)
    k('v_lshlrev_b32 v9, 4, v1')
    for mu in range(4):
        k(f's_add_u32 s6, s4, {mu}')
        k('s_and_b32 s6, s6, 3')
        if mu: k(f's_mul_i32 s{70+mu}, s6, 12288')
        k('s_lshl_b32 s7, s3, 2')
        k('s_add_u32 s6, s6, s7')
        k(f's_mul_i32 s6, s6, {43*1024}')
        k(f's_add_u32 s6, s6, {HF}')
        k(f'v_add_u32 v{4+mu}, s6, v9')
    k(f's_mul_i32 s6, s5, {43*4096}')
    k(f's_add_u32 s6, s6, {W2F}')
    k('v_add_u32 v8, s6, v9')
    k('s_lshl_b32 s6, s3, 6')
    k('s_lshl_b32 s7, s4, 4')
    k('s_add_u32 s6, s6, s7')
    k('v_add_u32 v10, s6, v2')
    k('v_lshlrev_b32 v11, 2, v10')
    k('v_lshlrev_b32 v10, 10, v10')
    k('v_lshl_add_u32 v10, v3, 5, v10')
    k('s_lshl_b32 s6, s5, 7')
    k('v_add_u32 v10, s6, v10')
    k.wait(lg=0)
    stamp(k, 0, WS_, DBG_, 250, 252)
    srd(k, 40, OUT_, 2097152); srd(k, 44, WS_, WS_USED)
    RING = 8
    def loads(s, sh, sw):
        base = 32 * (s % RING)
        for u in range(4):
            k(f'buffer_load_dwordx4 a[{base+4*u}:{base+4*u+3}], v8, s[44:47], {sw} offen offset:{1024*u}', tag=f's{s}')
        for mu in range(4):
            k(f'buffer_load_dwordx4 a[{base+16+4*mu}:{base+16+4*mu+3}], v{4+mu}, s[44:47], {sh} offen', tag=f's{s}')
    k('s_add_u32 s10, s4, 40')
    k('s_lshl_b32 s11, s10, 12')
    k('s_lshl_b32 s10, s10, 10')
    k('s_cmp_eq_u32 s4, 3')
    k('s_cbranch_scc1 k2_skip0')
    loads(0, 's10', 's11')
    k('k2_skip0:')
    k('s_mul_i32 s10, s4, 10240')
    k('s_lshl_b32 s11, s10, 2')
    PRE = 6
    def nxt(s):
        loads(s, 's10', 's11')
        k('s_add_u32 s10, s10, 1024')
        k('s_add_u32 s11, s11, 4096')
    for s in range(1, 1 + PRE): nxt(s)
    k(f's_mov_b32 s12, {X1}')
    k(f's_mov_b32 s13, {R2}')
    k('buffer_load_dwordx4 v[96:99], v10, s[44:47], s12 offen', tag='x1')
    k('buffer_load_dwordx4 v[100:103], v10, s[44:47], s12 offen offset:16', tag='x1')
    k('buffer_load_dword v104, v11, s[44:47], s13 offen', tag='x1')
    ACC = 32
    for i in range(64): k(f'v_mov_b32 v{ACC+i}, 0')
    def mm(s):
        base = 32 * (s % RING)
        for mu in range(4):
            for u in range(4):
                a = ACC + 16 * mu + 4 * u
                k(f'v_mfma_f32_16x16x32_bf16 v[{a}:{a+3}], a[{base+4*u}:{base+4*u+3}], a[{base+16+4*mu}:{base+16+4*mu+3}], v[{a}:{a+3}]')
    k('s_cmp_eq_u32 s4, 3')
    k('s_cbranch_scc1 k2_skip1')
    k.wait(vm='s0')
    mm(0)
    k('k2_skip1:')
    for s in range(1, 11):
        if s + PRE <= 10: nxt(s + PRE)
        k.wait(vm=f's{s}')
        mm(s)
    for mu in range(1, 4):
        k(f'v_add_u32 v{12+mu}, s{70+mu}, v9')
    for mu in range(1, 4):
        for u in range(4):
            a = ACC + 16 * mu + 4 * u
            k(f'ds_write_b128 v{12+mu}, v[{a}:{a+3}] offset:{(mu-1)*4096+1024*u}')
    k('s_mul_i32 s6, s4, 12288')
    k('v_add_u32 v12, s6, v9')
    k('s_mov_b32 s24, 0xffff0000')
    for d in range(8):
        k(f'v_lshlrev_b32 v{112+2*d}, 16, v{96+d}')
        k(f'v_and_b32 v{113+2*d}, s24, v{96+d}')
    k.wait(lg=0)
    k('s_barrier')
    for sl in range(3):
        for u in range(4):
            a = ACC + 16 * (sl + 1) + 4 * u
            k(f'ds_read_b128 v[{a}:{a+3}], v12 offset:{sl*4096+1024*u}', tag=f'r{sl}')
    for sl in range(3):
        k.wait(lg=f'r{sl}')
        for i in range(8):
            a = ACC + 2 * i; b = ACC + 16 * (sl + 1) + 2 * i
            k(f'v_pk_add_f32 v[{a}:{a+1}], v[{a}:{a+1}], v[{b}:{b+1}]')
    for r in range(4):
        for u in range(4):
            e = 4 * r + u
            k(f'v_fma_f32 v{112+e}, v{ACC+4*u+r}, v104, v{112+e}')
    for d in range(8):
        k(f'v_cvt_pk_bf16_f32 v{96+d}, v{112+2*d}, v{113+2*d}')
    k('buffer_store_dwordx4 v[96:99], v10, s[40:43], 0 offen')
    k('buffer_store_dwordx4 v[100:103], v10, s[40:43], 0 offen offset:16')
    if STAMP: k('s_waitcnt vmcnt(0)')
    stamp(k, 1, WS_, DBG_, 250, 252)
    k('k2_end:')
    k('s_endpgm')
    return k.text(256 if STAMP else 128, 256, 96), 49152

kc, lc = gen_kc(); k1, l1 = gen_k1(); k2, l2 = gen_k2()
hdr = open('cdna_kernels/%s.s.ref' % NAME).read().split('; Override')[0]
out = hdr
for n, l in (('kc', lc), ('k1', l1), ('k2', l2), ('k1', l1), ('k2', l2)):
    out += f'; @launch kernel={n}_kernel grid=(256,1,1) block=(256,1,1) lds={l}\n'
out += '.amdgcn_target "amdgcn-amd-amdhsa--gfx950"\n' + kc + k1 + k2
dst = [a for a in sys.argv[1:] if not a.startswith('--')][0]
open(dst, 'w').write(out)
```

```python
import sys
from asmlib import K

STAMP = '--stamp' in sys.argv
PLAIN = '--plain' in sys.argv
SC = '' if PLAIN else ' sc1'
NAME = 'interleave_layers__ssm_conv_h3__dense_activation_relu__prompt'

YT   = 0x000000
KVT  = 0x200000
W1F  = 0x400000
W2F  = 0x580000
CS16 = 0x700000
FLA  = 0x720000
FLB  = 0x721000
PS   = 0x740000
X2F  = 0x800000
HF   = [0xA00000, 0x1000000]
WS_USED = 0x1600000
STAMPS = 0x1800000
OOB = 0x7FFF0000
SPIN = 200000

Q_, K_, V_, SHK_, SSMK_, SSMD_, BX_, W1_, W2_, OUT_, DBG_, WS_ = 16, 18, 20, 22, 24, 26, 28, 30, 32, 34, 36, 38

def srd(k, d, base, size):
    k(f's_mov_b32 s{d}, s{base}')
    k(f's_mov_b32 s{d+1}, s{base+1}')
    k(f's_mov_b32 s{d+2}, {size}')
    k(f's_mov_b32 s{d+3}, 0x20000')

class Stamper:
    def __init__(self, k, sbase):
        self.k = k; self.sb = sbase; self.used = []
    def __call__(self, which):
        if not STAMP: return
        self.k.lines.append(f's_memrealtime s[{self.sb+2*which}:{self.sb+2*which+1}]')
        self.k.lg.append(('SMEM', False))
        self.used.append(which)
    def flush(self, vt, swave):
        if not STAMP: return
        k = self.k
        k('s_waitcnt vmcnt(0)')
        self(1)
        k.wait(lg=0)
        l = k.label('nost')
        k(f's_cmp_lg_u32 s{swave}, 0'); k(f's_cbranch_scc1 {l}')
        k(f's_lshr_b32 s6, s{DBG_}, 9'); k('s_and_b32 s6, s6, 7'); k('s_lshl_b32 s6, s6, 15')
        k('s_lshl_b32 s7, s2, 7'); k('s_add_u32 s6, s6, s7'); k(f's_add_u32 s6, s6, {STAMPS}')
        k(f'v_mov_b32 v{vt+2}, s6')
        for w in self.used:
            k(f'v_mov_b32 v{vt}, s{self.sb+2*w}'); k(f'v_mov_b32 v{vt+1}, s{self.sb+2*w+1}')
            k(f'global_store_dwordx2 v{vt+2}, v[{vt}:{vt+1}], s[{WS_}:{WS_+1}] offset:{8*w}')
            k('s_nop 1')
        k(f'{l}:')

def poll(k, vdst, voff, srd_, soff, sval, scnt):
    lp = k.label('poll'); dn = k.label('done')
    k(f's_mov_b32 s{scnt}, {SPIN}')
    k(f'{lp}:')
    k(f'buffer_load_dword v{vdst}, v{voff}, s[{srd_}:{srd_+3}], {soff} offen sc1')
    k.wait(vm=0)
    k(f'v_cmp_gt_u32 vcc, {sval}, v{vdst}')
    k(f's_cbranch_vccz {dn}')
    k(f's_sub_u32 s{scnt}, s{scnt}, 1')
    k(f's_cmp_lg_u32 s{scnt}, 0')
    k(f's_cbranch_scc1 {lp}')
    k(f'{dn}:')

def merge(a, b):
    out = []; ia = ib = 0
    while ia < len(a) or ib < len(b):
        if ib >= len(b) or (ia < len(a) and ia * len(b) <= ib * len(a)):
            out.append(a[ia]); ia += 1
        else:
            out.append(b[ib]); ib += 1
    return out

def gen_ka():
    k = K('ka_kernel')
    st = Stamper(k, 74)
    U0, US, HB, HC, HR = 0, 4608, 9216, 33280, 4160
    JB = 75776
    k('s_cmp_ge_u32 s2, 256')
    k('s_cbranch_scc1 ka_end')
    k('s_load_dwordx16 s[16:31], s[0:1], 0')
    k('s_load_dwordx8 s[32:39], s[0:1], 64')
    k('s_and_b32 s3, s2, 7')
    k('s_lshr_b32 s5, s2, 3')
    k('s_lshl_b32 s7, s3, 5')
    k('s_add_u32 s7, s7, s5')
    k('v_lshrrev_b32 v2, 6, v0')
    k('v_readfirstlane_b32 s4, v2')
    k('v_and_b32 v1, 63, v0')
    k('v_and_b32 v2, 15, v0')
    k('v_bfe_u32 v3, v0, 4, 2')
    k(f'v_mov_b32 v7, {OOB}')
    k('v_lshrrev_b32 v13, 5, v0')
    k('v_and_b32 v14, 31, v0')
    k('s_lshl_b32 s6, s5, 16')
    k('s_lshl_b32 s8, s3, 7')
    k('s_add_u32 s6, s6, s8')
    k('v_lshl_add_u32 v4, v13, 13, s6')
    k('v_lshl_add_u32 v4, v14, 2, v4')
    k('v_subrev_u32 v5, 3072, v4')
    k('s_lshl_b32 s8, s3, 9')
    k('v_lshl_add_u32 v6, v14, 4, s8')
    k('s_lshl_b32 s8, s3, 18')
    k('s_lshl_b32 s9, s5, 8')
    k('s_add_u32 s8, s8, s9')
    k(f's_add_u32 s8, s8, {KVT}')
    k('v_lshl_add_u32 v11, v14, 13, s8')
    k('v_lshl_add_u32 v11, v13, 5, v11')
    k('s_lshl_b32 s8, s3, 7'); k(f's_add_u32 s8, s8, {FLA}')
    k('s_cmp_eq_u32 s5, 0'); k(f's_cselect_b32 s9, s8, {OOB}')
    k('s_lshl_b32 s10, s2, 7'); k(f's_add_u32 s10, s10, {FLB}')
    k('s_cmp_lt_u32 s2, 32'); k(f's_cselect_b32 s10, s10, {OOB}')
    k('s_cmp_eq_u32 s4, 1'); k(f's_cselect_b32 s10, s10, {OOB}')
    k('s_cmp_eq_u32 s4, 0'); k('s_cselect_b32 s9, s9, s10')
    k('v_lshl_add_u32 v12, v14, 2, s9')
    k('v_mov_b32 v15, 0')
    k('s_lshl_b32 s11, s3, 2')
    k('s_or_b32 s10, s5, s4')
    k('s_cmp_eq_u32 s10, 0'); k(f's_cselect_b32 s10, s11, {OOB}')
    k('v_mov_b32 v48, s10')
    k('v_mov_b32 v49, 1')
    k('v_mov_b32 v50, s11')
    k('s_lshl_b32 s6, s7, 13')
    k('v_lshl_add_u32 v9, v0, 4, s6')
    k('v_subrev_u32 v8, 16, v9')
    k('v_cmp_eq_u32 vcc, 0, v0')
    k('v_cndmask_b32 v8, v8, v7, vcc')
    k.wait(lg=0)
    st(0)
    srd(k, 52, WS_, WS_USED)
    k('buffer_store_dword v15, v12, s[52:55], 0 offen sc1', tag='zero')
    srd(k, 40, K_, 2097152); srd(k, 44, V_, 2097152); srd(k, 60, SHK_, 4096)
    k('s_mov_b32 s9, 4096')
    k('buffer_load_dwordx4 v[36:39], v6, s[60:63], 0 offen', tag='kv')
    for e in range(11):
        if e < 3: k(f'buffer_load_dword v{16+e}, v5, s[40:43], 0 offen offset:{1024*e}', tag='kv')
        else:
            o = e - 3
            k(f'buffer_load_dword v{16+e}, v4, s[40:43], {"s9" if o >= 4 else "0"} offen offset:{1024*(o&3)}', tag='kv')
    for e in range(8):
        k(f'buffer_load_dword v{28+e}, v4, s[44:47], {"s9" if e >= 4 else "0"} offen offset:{1024*(e&3)}', tag='kv')
    srd(k, 48, SSMK_, 2097152); srd(k, 64, DBG_, 256)
    for c in range(2):
        d = 56 + 8 * c
        so = 's9' if c else '0'
        k(f'buffer_load_dwordx4 v[{d}:{d+3}], v8, s[48:51], {so} offen', tag='h')
        k(f'buffer_load_dwordx4 v[{d+4}:{d+7}], v9, s[48:51], {so} offen', tag='h')
    k('s_lshl_b32 s6, s7, 2')
    k('s_load_dword s72, s[26:27], s6')
    k('s_lshl_b32 s13, s4, 8'); k('s_add_u32 s13, s13, s2')
    k('s_sub_u32 s14, s13, 352')
    k('s_lshr_b32 s15, s13, 4'); k('s_and_b32 s68, s13, 15')
    k(f's_mul_i32 s69, s68, {32*2752}'); k('s_lshl_b32 s70, s15, 7'); k('s_add_u32 s69, s69, s70')
    k('s_lshl_b32 s70, s15, 16'); k('s_lshl_b32 s71, s68, 10'); k('s_add_u32 s70, s70, s71'); k(f's_add_u32 s70, s70, {W1F}')
    k(f's_mul_i32 s71, s68, {88*64}'); k('s_lshl_b32 s15, s15, 8'); k('s_add_u32 s71, s71, s15'); k(f's_add_u32 s71, s71, {CS16}')
    k('s_lshr_b32 s15, s14, 3'); k('s_and_b32 s68, s14, 7')
    k('s_lshl_b32 s10, s15, 15'); k('s_lshl_b32 s11, s68, 7'); k('s_add_u32 s10, s10, s11')
    k('s_mul_i32 s11, s68, 43'); k('s_add_u32 s11, s11, s15'); k('s_lshl_b32 s11, s11, 12'); k(f's_add_u32 s11, s11, {W2F}')
    k('s_cmp_ge_u32 s13, 352')
    k('s_cselect_b32 s69, s10, s69')
    k('s_cselect_b32 s70, s11, s70')
    k(f's_cselect_b32 s71, {OOB}, s71')
    k('s_cselect_b32 s56, s32, s30'); k('s_cselect_b32 s57, s33, s31')
    k(f's_mov_b32 s58, {512*1376*2}'); k('s_mov_b32 s59, 0x20000')
    k('s_mov_b32 s10, 2752'); k('s_cselect_b32 s10, 1024, s10')
    k(f's_mov_b32 s11, {8*2752}'); k('s_cselect_b32 s11, 4096, s11')
    k('s_mov_b32 s12, 16384'); k('s_cselect_b32 s12, 1024, s12')
    k('s_cselect_b32 s14, 4, 3')
    k('s_cselect_b32 s15, 8, 32')
    k('s_cselect_b32 s68, 16, 4')
    k('s_cmp_ge_u32 s13, 696')
    k(f's_cselect_b32 s69, {OOB}, s69'); k(f's_cselect_b32 s70, {OOB}, s70')
    k('v_lshrrev_b32 v10, 5, v1'); k('v_mul_lo_u32 v10, v10, s68')
    k('v_bfe_u32 v51, v1, 3, 2'); k('v_add_u32 v10, v10, v51')
    k('v_mul_lo_u32 v10, v10, s10')
    k('v_and_b32 v51, 7, v1'); k('v_lshl_add_u32 v10, v51, 4, v10')
    k('v_add_u32 v10, s69, v10')
    k('s_lshl_b32 s13, s4, 12'); k(f's_add_u32 s13, s13, {JB}')
    k('s_mov_b32 m0, s13'); k('s_mov_b32 s69, 0')
    for n in range(4):
        k('buffer_load_dwordx4 v10, s[56:59], s69 offen lds', tag='job')
        if n < 3: k('s_add_u32 m0, m0, 1024'); k('s_add_u32 s69, s69, s11')
    k('v_lshrrev_b32 v51, 2, v2'); k('v_lshl_add_u32 v51, v3, 3, v51'); k('v_lshlrev_b32 v51, 7, v51')
    k('v_and_b32 v52, 3, v1'); k('v_lshlrev_b32 v52, s14, v52')
    k('v_add3_u32 v52, v51, v52, s13')
    k('v_add_u32 v53, s15, v52')
    k('v_lshl_add_u32 v54, v1, 4, s70')
    k('v_lshl_add_u32 v55, v3, 4, s71')
    k.wait(vm='zero')
    k('buffer_store_dword v49, v48, s[64:67], 0 offen sc1', tag='rdy')
    for i in range(4): k(f'v_mov_b32 v{144+i}, 0')
    k('v_lshlrev_b32 v13, 4, v14')
    k(f'ds_write_b128 v13, v[144:147] offset:{U0}')
    k(f'ds_write_b128 v13, v[144:147] offset:{U0+US}')
    k(f's_mov_b32 s6, {HR}')
    k('v_mul_lo_u32 v13, v2, s6')
    k(f'ds_write_b128 v13, v[144:147] offset:{HB}')
    k('s_mov_b32 s73, 0xffff0000')
    k.wait(vm='kv', lg=0)
    st(2)
    k('v_lshlrev_b32 v40, 16, v36'); k('v_lshlrev_b32 v41, 16, v38')
    k('v_and_b32 v42, s73, v36'); k('v_and_b32 v43, s73, v38')
    k('v_lshlrev_b32 v44, 16, v37'); k('v_lshlrev_b32 v45, 16, v39')
    k('v_and_b32 v46, s73, v37'); k('v_and_b32 v47, s73, v39')
    for e in range(11):
        k(f'v_lshlrev_b32 v{144+2*e}, 16, v{16+e}'); k(f'v_and_b32 v{145+2*e}, s73, v{16+e}')
    KP = lambda e: f'v[{144+2*e}:{145+2*e}]'
    for i in range(8):
        a = f'v[{166+2*i}:{167+2*i}]'
        k(f'v_pk_mul_f32 {a}, {KP(i+3)}, v[40:41]')
        k(f'v_lshlrev_b32 v182, 16, v{28+i}')
        k(f'v_pk_fma_f32 {a}, {KP(i+2)}, v[42:43], {a}')
        k(f'v_and_b32 v183, s73, v{28+i}')
        k(f'v_pk_fma_f32 {a}, {KP(i+1)}, v[44:45], {a}')
        k(f'v_pk_fma_f32 {a}, {KP(i)}, v[46:47], {a}')
        k(f'v_pk_mul_f32 {a}, {a}, v[182:183]')
    for c in range(2):
        for d in range(4):
            k(f'v_cvt_pk_bf16_f32 v{184+4*c+d}, v{166+2*(7-2*d)+c}, v{166+2*(6-2*d)+c}')
    k('buffer_store_dwordx4 v[184:187], v11, s[52:55], 0 offen sc1', tag='kvt')
    k('buffer_store_dwordx4 v[188:191], v11, s[52:55], 0 offen offset:16 sc1', tag='kvt')
    k('buffer_load_dword v51, v50, s[64:67], 0 offen sc1', tag='kvt')
    k('v_lshlrev_b32 v13, 4, v0')
    k(f'v_add_u32 v14, {HB+16+HC}, v13')
    k(f'v_add_u32 v13, {HB+16}, v13')
    k.wait(vm='h')
    for c in range(2):
        d = 56 + 8 * c
        E, O, P = (72, 78, 84) if c == 0 else (96, 102, 108)
        a = f'v{13+c}'
        for i in range(6): k(f'v_mov_b32 v{E+i}, v{d+1+i}')
        for i in range(6): k(f'v_alignbit_b32 v{O+i}, v{d+i+1}, v{d+i}, 16')
        for i in range(6): k(f'v_alignbit_b32 v{P+i}, v{d+i+2}, v{d+i+1}, 16')
        src = {1: O, 2: E, 3: P, 4: d + 2, 5: O + 2, 6: E + 2, 7: P + 2, 8: d + 4}
        for sg in range(1, 9):
            s = src[sg]
            k(f'ds_write_b128 {a}, v[{s}:{s+3}] offset:{(sg-1)*HR}')
    k('s_lshr_b32 s68, s4, 1')
    k('s_and_b32 s69, s4, 1')
    k('s_lshl_b32 s70, s72, 16'); k('s_and_b32 s71, s72, 0xffff0000')
    k('s_cmp_eq_u32 s68, 1'); k('s_cselect_b32 s72, s71, s70')
    k.wait(vm=0)
    k('v_cmp_eq_u32 vcc, 0, v51')
    k('s_cbranch_vccz ka_clean')
    poll(k, 51, 50, 64, '0', '1', 10)
    k('ka_clean:')
    k.wait(lg=0)
    k('s_barrier')
    st(3)
    k('s_lshl_b32 s10, s5, 2'); k('s_add_u32 s10, s10, s8')
    k('s_cmp_eq_u32 s4, 0'); k(f's_cselect_b32 s10, s10, {OOB}')
    k('v_mov_b32 v48, s10')
    k('buffer_store_dword v49, v48, s[52:55], 0 offen sc1')
    k('v_and_b32 v13, 7, v0')
    k('v_mul_lo_u32 v13, v13, s6')
    k('v_lshrrev_b32 v14, 3, v2')
    k('v_sub_u32 v14, v14, v3')
    k('v_lshl_add_u32 v13, v14, 4, v13')
    k(f's_mul_i32 s70, s68, {HC}')
    k('s_lshl_b32 s71, s69, 9')
    k('s_add_u32 s70, s70, s71')
    k(f's_add_u32 s70, s70, {HB + 48 - 512}')
    k('v_add_u32 v13, s70, v13')
    for ip in range(8):
        for rho in range(8):
            a = 4 * (8 * ip + rho)
            k(f'ds_read_b128 a[{a}:{a+3}], v13 offset:{512*ip + 64*rho}')
    k(f's_mul_i32 s70, s68, {US}')
    k('v_lshlrev_b32 v14, 5, v2')
    k('v_lshl_add_u32 v14, v3, 4, v14')
    k(f's_add_u32 s10, s70, {U0+32}')
    k('v_add_u32 v14, s10, v14')
    k('v_lshlrev_b32 v15, 4, v0')
    k('v_lshlrev_b32 v90, 5, v2')
    k('v_xor_b32 v91, 1, v3')
    k('v_lshl_add_u32 v90, v91, 3, v90')
    k('s_add_u32 s10, s70, s71'); k(f's_add_u32 s10, s10, {U0+512}')
    k('v_add_u32 v90, s10, v90')
    k('s_lshl_b32 s10, s7, 1'); k('s_add_u32 s10, s10, s68')
    k('s_bfe_u32 s11, s10, 0x10001'); k('s_bfe_u32 s13, s10, 0x10003'); k('s_lshl_b32 s13, s13, 1'); k('s_or_b32 s11, s11, s13')
    k('v_and_b32 v91, 3, v2'); k('v_xor_b32 v91, s11, v91'); k('v_lshlrev_b32 v91, 5, v91')
    k('v_lshl_add_u32 v91, v3, 3, v91')
    k('v_lshrrev_b32 v92, 2, v2'); k('v_lshl_add_u32 v91, v92, 16, v91')
    k('s_lshl_b32 s10, s10, 7'); k('s_lshl_b32 s11, s69, 18'); k('s_add_u32 s10, s10, s11')
    if YT: k(f's_add_u32 s10, s10, {YT}')
    k('v_add_u32 v91, s10, v91')
    k('s_lshl_b32 s10, s7, 13'); k(f's_add_u32 s10, s10, {KVT}')
    k('v_lshl_add_u32 v92, v0, 5, s10')
    k('v_and_b32 v93, 7, v0'); k('s_lshl_b32 s10, s4, 5'); k('v_lshl_add_u32 v93, v93, 2, s10')
    poll(k, 51, 93, 52, 's8', '1', 10)
    st(4)
    k('buffer_load_dwordx4 v[192:195], v92, s[52:55], 0 offen sc1', tag='u')
    k('buffer_load_dwordx4 v[196:199], v92, s[52:55], 0 offen offset:16 sc1', tag='u')
    for u in range(4):
        for h in range(2):
            k(f'ds_read_b64_tr_b16 v[{200+4*u+2*h}:{201+4*u+2*h}], v{52+(u&1)} offset:{64*(u>>1)+512*h}')
    for i in range(4): k(f'v_mov_b32 v{232+i}, 0x3f803f80')
    k.wait(lg=0)
    k('s_mov_b32 s10, 0')
    for u in range(4):
        k(f'buffer_store_dwordx4 v[{200+4*u}:{203+4*u}], v54, s[52:55], s10 offen')
        k(f'v_mfma_f32_16x16x32_bf16 v[{216+4*u}:{219+4*u}], v[{200+4*u}:{203+4*u}], v[232:235], 0')
        if u < 3: k('s_add_u32 s10, s10, s12')
    for u in range(4):
        k(f'buffer_store_dwordx4 v[{216+4*u}:{219+4*u}], v55, s[52:55], 0 offen offset:{64*u}')
    k.wait(vm='u')
    k(f'ds_write_b128 v15, v[192:195] offset:{U0+512}')
    k(f'ds_write_b128 v15, v[196:199] offset:{U0+US+512}')
    k.wait(lg=0)
    k('s_barrier')
    st(5)
    BB = [96, 144]
    def bread(j, rho):
        b = BB[j & 1] + 4 * rho
        return lambda: k(f'ds_read_b128 v[{b}:{b+3}], v14 offset:{512*j + 64*(7-rho)}', tag=f'b{j}_{rho}')
    for rho in range(8): bread(0, rho)()
    for tau in range(4): k(f'ds_read_b64 v[{176+2*tau}:{177+2*tau}], v90 offset:{1024*tau}', tag='kvr')
    T = 184
    for tau in range(4): k(f's_mov_b32 s{12+tau}, {tau*524288}')
    for j in range(8):
        taus = [t for t in range(4) if 2 * t - j >= 0]
        def mm(tau, rho, j=j):
            ip = 2 * tau - j + 1
            a = 4 * (8 * ip + rho); acc = 128 + 4 * tau; b = BB[j & 1] + 4 * rho
            c = '0' if (j == 0 and rho == 0) else f'v[{acc}:{acc+3}]'
            return lambda: k(f'v_mfma_f32_16x16x32_bf16 v[{acc}:{acc+3}], a[{a}:{a+3}], v[{b}:{b+3}], {c}')
        if j % 2 == 1:
            k.wait(lg=f'b{j}_7')
            sk = k.label('skip')
            k('s_cmp_eq_u32 s69, 0'); k(f's_cbranch_scc1 {sk}')
            for rho in range(8): mm((j - 1) // 2, rho)()
            k(f'{sk}:')
        ml = []
        for rho in range(8):
            ml.append(lambda rho=rho, j=j: k.wait(lg=f'b{j}_{rho}'))
            for tau in taus: ml.append(mm(tau, rho))
        ol = [bread(j + 1, rho) for rho in range(8)] if j < 7 else []
        if j % 2 == 1:
            tau = (j - 1) // 2; acc = 128 + 4 * tau; kv = 176 + 2 * tau
            ep = [f'v_and_b32 v{T}, s73, v{kv+1}', f'v_lshlrev_b32 v{T+1}, 16, v{kv+1}', f'v_and_b32 v{T+2}, s73, v{kv}', f'v_lshlrev_b32 v{T+3}, 16, v{kv}']
            ep += [f'v_fma_f32 v{T+rr}, v{T+rr}, s72, v{acc+rr}' for rr in range(4)]
            ep += [f'v_cvt_pk_bf16_f32 v{T+4}, v{T}, v{T+1}', f'v_cvt_pk_bf16_f32 v{T+5}, v{T+2}, v{T+3}',
                   f'buffer_store_dwordx2 v[{T+4}:{T+5}], v91, s[52:55], s{12+tau} offen']
            ol += [(lambda s=s: k(s)) for s in ep]
        for f in merge(ml, ol) if taus else ol: f()
    st.flush(250, 4)
    k('ka_end:')
    k('s_endpgm')
    return k.text(256, 256, 96), JB + 16384

def gen_kb():
    k = K('kb_kernel')
    st = Stamper(k, 68)
    YL, XA, SP = 0, 65536, 114688
    STM = XA + 32768
    X, BX, CS, ACC, YR, TMP = 32, 96, 112, 128, 176, 184
    ONES, S2, Q2, SAVA, SAVB, P1, R2R, ONE = 16, 20, 24, 28, 124, 12, 14, 15
    k('s_cmp_ge_u32 s2, 256')
    k('s_cbranch_scc1 kb_end')
    k('s_load_dwordx2 s[16:17], s[0:1], 0')
    k('s_load_dwordx8 s[32:39], s[0:1], 64')
    k('s_and_b32 s3, s2, 7'); k('s_lshl_b32 s3, s3, 2'); k('s_lshr_b32 s5, s2, 6'); k('s_add_u32 s3, s3, s5')
    k('s_bfe_u32 s5, s2, 0x30003')
    k('v_lshrrev_b32 v2, 6, v0')
    k('v_readfirstlane_b32 s4, v2')
    k('v_and_b32 v1, 63, v0')
    k('v_and_b32 v2, 15, v0')
    k('v_bfe_u32 v3, v0, 4, 2')
    k('v_and_b32 v11, 3, v1')
    k('v_lshlrev_b32 v1, 4, v1')
    k('s_lshl_b32 s6, s3, 6'); k('s_lshl_b32 s7, s4, 4'); k('s_add_u32 s6, s6, s7')
    k('v_add_u32 v0, s6, v2')
    k('v_lshlrev_b32 v4, 10, v0'); k('v_lshl_add_u32 v4, v3, 4, v4')
    k('s_lshl_b32 s8, s3, 16'); k('s_lshl_b32 s9, s4, 10'); k('s_add_u32 s8, s8, s9')
    if YT: k(f's_add_u32 s8, s8, {YT}')
    k('s_mov_b32 m0, s9')
    k.wait(lg=0)
    st(0)
    srd(k, 40, 16, 2097152); srd(k, 44, WS_, WS_USED)
    for ks in range(16):
        k(f'buffer_load_dwordx4 v[{X+4*ks}:{X+4*ks+3}], v4, s[40:43], 0 offen offset:{64*ks}', tag=f'x{ks}')
    def ydma(n):
        def f():
            k('buffer_load_dwordx4 v1, s[44:47], s8 offen lds', tag=f'yd{n}')
            k('s_add_u32 m0, m0, 4096'); k('s_add_u32 s8, s8, 4096')
        return f
    for n in range(9): ydma(n)()
    srd(k, 48, OUT_, 2097152)
    k('s_lshr_b32 s10, s5, 1'); k('s_and_b32 s11, s5, 1')
    k('s_mul_i32 s12, s10, 11')
    k('s_lshl_b32 s13, s11, 2'); k('s_add_u32 s13, s13, s12'); k('s_add_u32 s13, s13, s4')
    k('s_add_u32 s14, s12, 8'); k('s_add_u32 s14, s14, s11')
    k('s_add_u32 s15, s12, 10')
    k('s_cmp_lt_u32 s4, 2')
    k('s_cselect_b32 s14, s14, s15')
    k('s_cselect_b32 s15, s4, s11')
    k('s_cmp_lt_u32 s14, 43'); k('s_cselect_b32 s18, 1, 0')
    k('s_cmp_lt_u32 s4, 3'); k('s_cselect_b32 s18, s18, 0')
    k('s_lshl_b32 s19, s14, 1'); k('s_add_u32 s19, s19, s15')
    k('s_lshl_b32 s6, s13, 15'); k(f's_add_u32 s6, s6, {W1F}')
    k('s_lshl_b32 s7, s19, 14'); k(f's_add_u32 s7, s7, {W1F}')
    k('s_cmp_eq_u32 s18, 1'); k(f's_cselect_b32 s7, s7, {OOB}')
    WV0, WV2, CV0, CV2 = 28, 29, 30, 31
    WV0, WV2 = 10, 11
    k(f'v_lshrrev_b32 v{TMP}, 2, v2')
    k(f'v_lshl_add_u32 v{TMP+1}, v3, 3, v{TMP}'); k(f'v_lshlrev_b32 v{TMP+1}, 7, v{TMP+1}')
    k(f'v_lshrrev_b32 v{TMP}, 1, v{TMP}'); k(f'v_and_b32 v{TMP+2}, 1, v3'); k(f'v_lshl_or_b32 v{TMP}, v{TMP+2}, 1, v{TMP}')
    k(f'v_xor_b32 v{TMP}, s4, v{TMP}')
    k(f'v_lshl_add_u32 v{TMP+1}, v{TMP}, 5, v{TMP+1}')
    k(f'v_lshl_add_u32 v5, v11, 3, v{TMP+1}')
    k(f'v_add_u32 v{WV0}, s6, v1'); k(f'v_add_u32 v{WV2}, s7, v1')
    for i in range(8): k(f's_mov_b32 s{20+i}, {4096*i}')
    def w1load(ks, t):
        a = 4 * (3 * ks + t)
        vo = WV2 if t == 2 else WV0
        so = 20 + (ks >> 2) + (4 if t == 1 else 0)
        return lambda: k(f'buffer_load_dwordx4 a[{a}:{a+3}], v{vo}, s[44:47], s{so} offen offset:{1024*(ks&3)}', tag=f'w{ks}')
    w1c = lambda c: [w1load(ks, t) for ks in range(4 * c, 4 * c + 4) for t in range(3)]
    for f in w1c(0): f()
    k(f's_mul_i32 s6, s3, {4*43}')
    k('s_add_u32 s7, s6, s13'); k('s_lshl_b32 s7, s7, 10'); k('v_add_u32 v8, s7, v1')
    k('s_add_u32 s7, s6, s14'); k('s_lshl_b32 s7, s7, 10'); k('s_lshl_b32 s15, s15, 3'); k('s_add_u32 s7, s7, s15')
    k('s_cmp_eq_u32 s18, 1'); k(f's_cselect_b32 s7, s7, {OOB}')
    k('v_add_u32 v9, s7, v1')
    k('s_lshl_b32 s52, s13, 7'); k(f's_add_u32 s52, s52, {CS16}')
    k('s_lshl_b32 s53, s19, 6'); k(f's_add_u32 s53, s53, {CS16}')
    k('s_lshl_b32 s6, s4, 12'); k(f's_add_u32 s6, s6, {XA}')
    k('v_add_u32 v6, s6, v1'); k(f'v_add_u32 v7, {XA}, v1')
    for i in range(4): k(f'v_mov_b32 v{ONES+i}, 0x3f803f80')
    k(f'v_mov_b32 v{ONE}, 1.0')
    k('s_mov_b32 s28, 0xffff0000'); k('s_mov_b32 s29, 0x3b000000')
    k('s_mov_b32 s54, 0x22222222'); k('s_mov_b32 s55, 0x22222222')
    k('s_mov_b32 s56, 0x44444444'); k('s_mov_b32 s57, 0x44444444')
    k('s_mov_b32 s58, 0x88888888'); k('s_mov_b32 s59, 0x88888888')
    k('s_mov_b32 s60, 0x00F0000F'); k('s_mov_b32 s61, 0xF0000F00')
    k('s_lshl_b32 s30, s3, 7'); k(f's_add_u32 s30, s30, {FLB}')
    k('s_lshl_b32 s31, s5, 2'); k('s_add_u32 s31, s31, s30'); k('s_cmp_eq_u32 s4, 0'); k(f's_cselect_b32 s31, s31, {OOB}')
    k('s_mul_i32 s62, s5, 43'); k('s_add_u32 s63, s62, s4'); k('s_add_u32 s63, s63, 40'); k('s_lshl_b32 s63, s63, 12'); k(f's_add_u32 s63, s63, {W2F}')
    k('s_mul_i32 s6, s4, 10'); k('s_add_u32 s62, s62, s6'); k('s_lshl_b32 s62, s62, 12'); k(f's_add_u32 s62, s62, {W2F}')

    def diag(dst, Q):
        return [f'v_cndmask_b32 v{dst}, v{Q}, v{Q+1}, s[54:55]', f'v_cndmask_b32 v{dst}, v{dst}, v{Q+2}, s[56:57]',
                f'v_cndmask_b32 v{dst}, v{dst}, v{Q+3}, s[58:59]']
    def finish_stats(vs, vq, mean, rstd, tmp):
        return [f'v_mul_f32 v{mean}, s29, v{vs}', f'v_mul_f32 v{tmp}, v{mean}, v{mean}', f'v_fma_f32 v{tmp}, v{vq}, s29, -v{tmp}',
                f'v_max_f32 v{tmp}, 0, v{tmp}', f'v_add_f32 v{tmp}, 0x3727c5ac, v{tmp}', f'v_rsq_f32 v{rstd}, v{tmp}']
    L_ = lambda s, tag=None: (lambda: k(s, tag=tag))

    def w2loads():
        out = []
        for s in range(8):
            for u in range(4):
                dst = f'a[{192+16*s+4*u}:{195+16*s+4*u}]' if s < 4 else f'v[{192+16*(s-4)+4*u}:{195+16*(s-4)+4*u}]'
                def f(s=s, u=u, dst=dst):
                    k(f'buffer_load_dwordx4 {dst}, v1, s[44:47], s62 offen offset:{1024*u}', tag='w2')
                    if u == 3: k('s_add_u32 s62, s62, 4096')
                out.append(f)
        for sl in range(3):
            for u in range(4):
                def f(sl=sl, u=u):
                    if u == 0:
                        if sl == 0:
                            k('s_mul_i32 s6, s4, 12288'); k(f's_add_u32 m0, s6, {SP}')
                        else: k('s_add_u32 m0, m0, 4096')
                    so = 's63' if sl == 2 else 's62'
                    k(f'buffer_load_dwordx4 v1, s[44:47], {so} offen offset:{1024*u} lds', tag='w2')
                    if u == 3 and sl == 0: k('s_add_u32 s62, s62, 4096')
                out.append(f)
        return out

    def csloads():
        out = [L_(f's_mov_b32 s6, {88*64}'), L_(f'v_mul_lo_u32 v{WV2}, v3, s6'), L_(f'v_lshl_add_u32 v{WV2}, v2, 2, v{WV2}')]
        for qq in range(4):
            for t in range(3):
                so = 's53' if t == 2 else 's52'
                def f(qq=qq, t=t, so=so):
                    k(f'buffer_load_dword v{48+4*t+qq}, v{WV2}, s[44:47], {so} offen offset:{64 if t == 1 else 0}', tag='cs')
                    if t == 2 and qq < 3:
                        k(f's_add_u32 s52, s52, {4*88*64}'); k(f's_add_u32 s53, s53, {4*88*64}')
                out.append(f)
        return out

    def csmm():
        out = [lambda: k.wait(vm='cs')]
        for qq in range(4):
            for t in range(3):
                out.append(L_(f'v_mfma_f32_16x16x4_f32 v[{CS+4*t}:{CS+4*t+3}], v{48+4*t+qq}, v{ONE}, {"0" if qq == 0 else f"v[{CS+4*t}:{CS+4*t+3}]"}'))
        return out
    BB = [BX, X]
    def layer(L):
        if L == 0:
            for ks in range(16):
                k.wait(vm=f'x{ks}')
                x = f'v[{X+4*ks}:{X+4*ks+3}]'
                k(f'v_mfma_f32_16x16x32_bf16 v[{S2}:{S2+3}], v[{ONES}:{ONES+3}], {x}, {"0" if ks == 0 else f"v[{S2}:{S2+3}]"}')
                k(f'v_mfma_f32_16x16x32_bf16 v[{Q2}:{Q2+3}], {x}, {x}, {"0" if ks == 0 else f"v[{Q2}:{Q2+3}]"}')
            for s in diag(TMP, Q2): k(s)
            k(f'v_cndmask_b32 v{TMP}, 0, v{TMP}, s[60:61]')
            k(f'v_mfma_f32_16x16x4_f32 v[{Q2}:{Q2+3}], v{ONE}, v{TMP}, 0')
            extra = {0: [ydma(n) for n in range(9, 16)] + w1c(1)[:6], 1: w1c(1)[6:] + w1c(2), 2: w1c(3) + csloads(), 3: W2L[:10] + csmm() + W2L[10:18], 4: W2L[18:28]}
            k.wait(vm='yd4')
        else:
            k(f'v_and_b32 v{TMP}, 7, v2'); k(f'v_lshlrev_b32 v{TMP}, 2, v{TMP}')
            k(f'v_lshlrev_b32 v{TMP+2}, 6, v0'); k(f'v_lshl_add_u32 v{TMP+2}, v3, 4, v{TMP+2}')
            k('s_lshl_b32 s6, s3, 2'); k('s_add_u32 s6, s6, s4'); k('s_lshl_b32 s6, s6, 14'); k(f's_add_u32 s64, s6, {X2F}')
            for i in range(1, 4): k(f's_add_u32 s{64+i}, s64, {4096*i}')
            k(f's_mov_b32 s7, {PS}')
            poll(k, TMP + 1, TMP, 44, 's30', '2', 6)
            st(8)
            k(f'buffer_load_dwordx4 v[{YR}:{YR+3}], v{TMP+2}, s[44:47], s7 offen sc1', tag='ps')
            xl = [L_(f'buffer_load_dwordx4 v[{X+4*ks}:{X+4*ks+3}], v1, s[44:47], s{64+(ks>>2)} offen offset:{1024*(ks&3)} sc1', tag=f'x{ks}') for ks in range(16)]
            for f in xl[:8]: f()
            k.wait(vm='ps')
            k(f'v_add_f32 v{TMP}, v{YR}, v{YR+2}'); k(f'v_add_f32 v{TMP+1}, v{YR+1}, v{YR+3}')
            k(f'v_mfma_f32_16x16x4_f32 v[{S2}:{S2+3}], v{ONE}, v{TMP}, 0')
            k(f'v_mfma_f32_16x16x4_f32 v[{Q2}:{Q2+3}], v{ONE}, v{TMP+1}, 0')
            extra = {0: xl[8:]}
        for s in finish_stats(S2, Q2, TMP, P1, TMP + 1): k(s)
        k(f'v_mul_f32 v{P1+1}, -v{TMP}, v{P1}')
        if L == 0: k('s_barrier')
        st(2 if L == 0 else 9)
        def yread(ks):
            y = YR + 4 * (ks & 1)
            return [L_(f'ds_read_b64_tr_b16 v[{y}:{y+1}], v5 offset:{YL+4096*ks}', f'y{ks}'),
                    L_(f'ds_read_b64_tr_b16 v[{y+2}:{y+3}], v5 offset:{YL+4096*ks+512}', f'y{ks}')]
        def E(c):
            out = []
            for ks in range(4 * c, 4 * c + 4):
                y = YR + 4 * (ks & 1)
                out.append(lambda ks=ks: k.wait(vm=f'x{ks}', lg=f'y{ks}'))
                if ks + 1 < 16: out += yread(ks + 1)
                for d in range(4):
                    xr = X + 4 * ks + d; T = TMP
                    if c == 0:
                        out += [L_(s) for s in (
                            f'v_lshlrev_b32 v{T}, 16, v{xr}', f'v_and_b32 v{T+1}, s28, v{xr}',
                            f'v_lshlrev_b32 v{T+2}, 16, v{y+d}',
                            f'v_pk_fma_f32 v[{T+4}:{T+5}], v[{T}:{T+1}], v[{P1}:{P1+1}], v[{P1}:{P1+1}] op_sel:[0,0,1] op_sel_hi:[1,0,1]',
                            f'v_and_b32 v{T+3}, s28, v{y+d}',
                            f'v_pk_fma_f32 v[{T+4}:{T+5}], v[{T+4}:{T+5}], v[{T+2}:{T+3}], v[{T}:{T+1}]',
                            f'v_cvt_pk_bf16_f32 v{xr}, v{T+4}, v{T+5}')]
                    else:
                        out += [L_(s) for s in (
                            f'v_lshlrev_b32 v{T}, 16, v{xr}', f'v_and_b32 v{T+1}, s28, v{xr}',
                            f'v_lshlrev_b32 v{T+2}, 16, v{y+d}', f'v_and_b32 v{T+3}, s28, v{y+d}',
                            f'v_fma_f32 v{T+4}, v{T}, v{P1}, v{P1+1}', f'v_fma_f32 v{T+5}, v{T+1}, v{P1}, v{P1+1}',
                            f'v_fmac_f32 v{T}, v{T+4}, v{T+2}', f'v_fmac_f32 v{T+1}, v{T+5}, v{T+3}',
                            f'v_cvt_pk_bf16_f32 v{xr}, v{T}, v{T+1}')]
                x = f'v[{X+4*ks}:{X+4*ks+3}]'
                out.append(L_(f'ds_write_b128 v6, {x} offset:{16384*(c&1)+1024*(ks&3)}', 'xw'))
                out.append(L_(f'v_mfma_f32_16x16x32_bf16 v[{S2}:{S2+3}], v[{ONES}:{ONES+3}], {x}, {"0" if ks == 0 else f"v[{S2}:{S2+3}]"}'))
                out.append(L_(f'v_mfma_f32_16x16x32_bf16 v[{Q2}:{Q2+3}], {x}, {x}, {"0" if ks == 0 else f"v[{Q2}:{Q2+3}]"}'))
            return out
        def bread(ks):
            c = ks >> 2
            return [L_(f'ds_read_b128 v[{BB[ks&1]+4*m}:{BB[ks&1]+4*m+3}], v7 offset:{16384*(c&1)+4096*m+1024*(ks&3)}', f'b{ks}') for m in range(4)]
        def mfma(ks, m, t):
            a = ACC + 4 * (3 * m + t); w = 4 * (3 * ks + t); b = BB[ks & 1] + 4 * m
            c = '0' if ks == 0 else f'v[{a}:{a+3}]'
            return L_(f'v_mfma_f32_16x16x32_bf16 v[{a}:{a+3}], a[{w}:{w+3}], v[{b}:{b+3}], {c}')
        def M(c, inj=None):
            out = []
            for ks in range(4 * c, 4 * c + 4):
                ml = [lambda ks=ks: k.wait(vm=(f'w{ks}' if L == 0 else None), lg=f'b{ks}')]
                ml += [mfma(ks, m, t) for m in range(4) for t in range(3)]
                ol = bread(ks + 1) if (ks & 3) < 3 else []
                if inj and ks in inj: ml = inj[ks](ml)
                out += [ml[0], ml[1]] + merge(ml[2:], ol)
            return out
        def save(c):
            l = k.label('nosave')
            k('s_lshr_b32 s6, s5, 1'); k(f's_cmp_lg_u32 s6, {c}'); k(f's_cbranch_scc1 {l}')
            k('s_and_b32 s6, s5, 1'); k('s_lshl_b32 s6, s6, 11'); k(f'v_add_u32 v{TMP}, s6, v6')
            k(f'ds_read_b128 v[{SAVA}:{SAVA+3}], v{TMP} offset:{16384*(c&1)}')
            k(f'ds_read_b128 v[{SAVB}:{SAVB+3}], v{TMP} offset:{16384*(c&1)+1024}')
            k(f'{l}:')
        for f in yread(0): f()
        for c in range(4):
            e = E(c)
            if c == 0: seq = merge(e, extra.get(0, []))
            else:
                for f in bread(4 * (c - 1)): f()
                e = merge(e, extra.get(c, []))
                seq = e[:14] + merge(M(c - 1), e[14:])
            for f in seq: f()
            save(c)
            if c == 3:
                k(f'v_mul_f32 v{TMP}, 0xbb000000, v{S2}')
                k('s_lshl_b32 s6, s4, 6'); k(f's_add_u32 s6, s6, {STM}')
                k(f'v_lshl_add_u32 v{TMP+1}, v2, 2, s6')
                k(f'ds_write_b32 v{TMP+1}, v{TMP}')
            if L == 0 and c < 3: k.wait(vm=f'yd{min(4*c+8, 15)}', lg=0)
            else: k.wait(lg=0)
            k('s_barrier')
        st(3 if L == 0 else 10)
        M2 = 64
        k(f'v_lshlrev_b32 v{TMP}, 2, v2'); k(f'v_add_u32 v{TMP}, {STM}, v{TMP}')
        for f in bread(12): f()
        for m in range(4): k(f'ds_read_b32 v{M2+2*m}, v{TMP} offset:{64*m}', tag='m2')
        for m in range(4): k(f's_mov_b32 s{64+m}, {HF[L] + m*43*1024}')
        def inj_r2(ml):
            ex = [L_(s) for s in diag(TMP, Q2)] + [L_(f'v_cndmask_b32 v{TMP}, 0, v{TMP}, s[60:61]'),
                  L_(f'v_mfma_f32_16x16x4_f32 v[{Q2}:{Q2+3}], v{ONE}, v{TMP}, 0')]
            return ml[:2] + merge(ml[2:], ex)
        def inj_fix(half):
            def inj(ml):
                out = [ml[0], lambda: k.wait(lg='m2')]
                def fix(i):
                    m, t = divmod(i, 3); a = ACC + 4 * i
                    return [L_(f'v_fmac_f32 v{a+h}, v{CS+4*t+h}, v{M2+2*m}') for h in range(2 * half, 2 * half + 2)]
                out += fix(0) + fix(1)
                for i in range(12):
                    if i + 2 < 12: out += fix(i + 2)
                    out.append(ml[1 + i])
                return out
            return inj
        def conv(m):
            o = 72 + 6 * m; out = []
            for t in range(3):
                a = ACC + 4 * (3 * m + t)
                out += [f'v_cvt_pk_bf16_f32 v{o+2*t}, v{a}, v{a+1}', f'v_cvt_pk_bf16_f32 v{o+2*t+1}, v{a+2}, v{a+3}',
                        f'v_pk_max_i16 v{o+2*t}, v{o+2*t}, 0', f'v_pk_max_i16 v{o+2*t+1}, v{o+2*t+1}, 0']
                if t == 1: out.append(f'buffer_store_dwordx4 v[{o}:{o+3}], v8, s[44:47], s{64+m} offen{SC}')
            out.append(f'buffer_store_dwordx2 v[{o+4}:{o+5}], v9, s[44:47], s{64+m} offen{SC}')
            return [L_(s, 'hst') for s in out]
        def inj_epi(ml):
            return ml[:8] + merge(ml[8:], conv(0)) + conv(1) + conv(2) + conv(3)
        seq = M(3, {12: inj_r2, 13: inj_fix(0), 14: inj_fix(1), 15: inj_epi})
        if L == 0:
            n = len(seq) * 2 // 3
            seq = merge(seq[:n], extra[4]) + seq[n:]
        for f in seq: f()
        st(4 if L == 0 else 11)
        GA = X
        if L == 0:
            for f in W2L[28:38]: f()
        for s_ in finish_stats(S2, Q2, TMP, R2R, TMP + 1): k(s_)
        for i in range(40): k(f'v_mov_b32 v{GA+i}, 0')
        k.wait(vm='hst')
        k(f'v_mov_b32 v{TMP}, {2*L+1}'); k(f'v_mov_b32 v{TMP+1}, s31')
        k('s_barrier')
        k(f'buffer_store_dword v{TMP}, v{TMP+1}, s[44:47], 0 offen{SC}')
        st(5 if L == 0 else 12)
        for i in range(40, 64): k(f'v_mov_b32 v{GA+i}, 0')
        if L == 0:
            for f in W2L[38:]: f()
        RING = [96, 128, 144, 160]; WT = 176
        order = [10, 0, 1, 2, 3, 8, 4, 5, 6, 7, 9]
        for mu in range(4):
            k(f's_add_u32 s6, s4, {mu}'); k('s_and_b32 s6, s6, 3')
            if mu: k(f's_mul_i32 s{9+mu}, s6, 12288')
            k('s_lshl_b32 s7, s3, 2'); k('s_add_u32 s6, s6, s7'); k('s_mul_i32 s6, s6, 43')
            k('s_mul_i32 s7, s4, 10'); k('s_add_u32 s6, s6, s7'); k('s_lshl_b32 s6, s6, 10')
            k(f's_add_u32 s{64+mu}, s6, {HF[L]}')
        k('v_add_u32 v10, 4096, v1'); k('v_add_u32 v11, 8192, v1')
        k('s_mul_i32 s6, s4, 9'); k('s_sub_u32 s6, 40, s6'); k('s_lshl_b32 s6, s6, 10')
        k(f'v_add_u32 v{P1}, s6, v1')
        k('s_mul_i32 s6, s4, 12288'); k(f's_add_u32 s6, s6, {SP}'); k(f'v_add_u32 v{P1+1}, s6, v1')
        k(f'v_and_b32 v{S2}, 7, v2'); k(f'v_lshlrev_b32 v{S2}, 2, v{S2}')
        poll(k, S2 + 1, S2, 44, 's30', str(2 * L + 1), 6)
        st(6 if L == 0 else 13)
        def hload(i):
            s = order[i]; r = RING[i % 4]
            vo = P1 if s == 10 else [1, 10, 11][s >> 2]
            off = 0 if s == 10 else 1024 * (s & 3)
            return [L_(f'buffer_load_dwordx4 v[{r+4*mu}:{r+4*mu+3}], v{vo}, s[44:47], s{64+mu} offen offset:{off} sc1', f'h{i}') for mu in range(4)]
        def wsp(sl):
            return [L_(f'ds_read_b128 v[{WT+4*u}:{WT+4*u+3}], v{P1+1} offset:{4096*sl+1024*u}', f'wt{sl}') for u in range(4)]
        def g2mm(i):
            s = order[i]; r = RING[i % 4]; out = []
            for mu in range(4):
                for u in range(4):
                    w = f'a[{192+16*s+4*u}:{195+16*s+4*u}]' if s < 4 else (f'v[{192+16*(s-4)+4*u}:{195+16*(s-4)+4*u}]' if s < 8 else f'v[{WT+4*u}:{WT+4*u+3}]')
                    a = GA + 16 * mu + 4 * u
                    out.append(L_(f'v_mfma_f32_16x16x32_bf16 v[{a}:{a+3}], {w}, v[{r+4*mu}:{r+4*mu+3}], v[{a}:{a+3}]'))
            return out
        for f in wsp(2): f()
        l0 = k.label('noopt'); l1 = k.label('noopt')
        k('s_cmp_eq_u32 s4, 3'); k(f's_cbranch_scc1 {l0}')
        for f in hload(0): f()
        k(f'{l0}:')
        for i in range(1, 4):
            for f in hload(i): f()
        k('s_cmp_eq_u32 s4, 3'); k(f's_cbranch_scc1 {l1}')
        k.wait(vm='h0', lg='wt2')
        for f in g2mm(0): f()
        k(f'{l1}:')
        for i in range(1, 11):
            ol = hload(i + 3) if i + 3 < 11 else []
            if i == 2: ol = ol + wsp(0)
            if i == 7: ol = ol + wsp(1)
            k.wait(vm=f'h{i}', lg={5: 'wt0', 10: 'wt1'}.get(i))
            ml = g2mm(i)
            for f in ml[:1] + merge(ml[1:], ol): f()
        st(7 if L == 0 else 14)
        for mu in range(1, 4): k(f'v_add_u32 v{S2+mu}, s{9+mu}, v7')
        for mu in range(1, 4):
            for u in range(4):
                a = GA + 16 * mu + 4 * u
                k(f'ds_write_b128 v{S2+mu}, v[{a}:{a+3}] offset:{(mu-1)*4096+1024*u}')
        k('s_mul_i32 s6, s4, 12288'); k(f'v_add_u32 v{S2}, s6, v7')
        XU = 128
        for h, sv in enumerate((SAVA, SAVB)):
            for d in range(4):
                k(f'v_lshlrev_b32 v{XU+8*h+2*d}, 16, v{sv+d}'); k(f'v_and_b32 v{XU+8*h+2*d+1}, s28, v{sv+d}')
        k.wait(lg=0)
        k('s_barrier')
        for sl in range(3):
            for u in range(4):
                a = GA + 16 * (sl + 1) + 4 * u
                k(f'ds_read_b128 v[{a}:{a+3}], v{S2} offset:{sl*4096+1024*u}', tag=f'r{sl}')
        if L == 0:
            k('s_lshl_b32 s6, s3, 2'); k('s_add_u32 s6, s6, s4'); k('s_lshl_b32 s6, s6, 14'); k('s_lshl_b32 s7, s5, 11'); k('s_add_u32 s6, s6, s7'); k(f's_add_u32 s64, s6, {X2F}')
            k('s_lshl_b32 s7, s5, 3'); k(f's_add_u32 s65, s7, {PS}')
            k(f'v_lshlrev_b32 v{P1}, 6, v0'); k(f'v_mov_b32 v{P1+1}, {OOB}')
            k(f'v_cndmask_b32 v{P1}, v{P1+1}, v{P1}, s[60:61]')
        else:
            k('s_lshl_b32 s64, s5, 7')
        for sl in range(3):
            k.wait(lg=f'r{sl}')
            for i in range(8):
                a = GA + 2 * i; b = GA + 16 * (sl + 1) + 2 * i
                k(f'v_pk_add_f32 v[{a}:{a+1}], v[{a}:{a+1}], v[{b}:{b+1}]')
        O = 144
        for i in range(8):
            k(f'v_pk_fma_f32 v[{XU+2*i}:{XU+2*i+1}], v[{GA+2*i}:{GA+2*i+1}], v[{R2R}:{R2R+1}], v[{XU+2*i}:{XU+2*i+1}] op_sel_hi:[1,0,1]')
            k(f'v_cvt_pk_bf16_f32 v{O+i}, v{XU+2*i}, v{XU+2*i+1}')
        if L == 0:
            k(f'buffer_store_dwordx4 v[{O}:{O+3}], v1, s[44:47], s64 offen{SC}', tag='xst')
            k(f'buffer_store_dwordx4 v[{O+4}:{O+7}], v1, s[44:47], s64 offen offset:1024{SC}', tag='xst')
            for h in range(2):
                x = f'v[{O+4*h}:{O+4*h+3}]'
                k(f'v_mfma_f32_16x16x32_bf16 v[{Q2}:{Q2+3}], {x}, {x}, {"0" if h == 0 else f"v[{Q2}:{Q2+3}]"}')
                k(f'v_mfma_f32_16x16x32_bf16 v[{S2}:{S2+3}], v[{ONES}:{ONES+3}], {x}, {"0" if h == 0 else f"v[{S2}:{S2+3}]"}')
            for s in diag(S2 + 1, Q2): k(s)
            k(f'buffer_store_dwordx2 v[{S2}:{S2+1}], v{P1}, s[44:47], s65 offen{SC}', tag='xst')
            k(f'v_mov_b32 v{TMP+4}, 2'); k(f'v_mov_b32 v{TMP+5}, s31')
            k.wait(vm=0)
            k('s_barrier')
            k(f'buffer_store_dword v{TMP+4}, v{TMP+5}, s[44:47], 0 offen{SC}')
            st(15)
        else:
            k(f'buffer_store_dwordx4 v[{O}:{O+3}], v4, s[48:51], s64 offen')
            k(f'buffer_store_dwordx4 v[{O+4}:{O+7}], v4, s[48:51], s64 offen offset:64')
    W2L = w2loads()
    layer(0)
    layer(1)
    st.flush(TMP, 4)
    k('kb_end:')
    k('s_endpgm')
    return k.text(256, 256, 102), 163840

ka, la = gen_ka(); kb, lb = gen_kb()
hdr = open('cdna_kernels/%s.s.ref' % NAME).read().split('; Override')[0]
out = hdr
for n, l in (('ka', la), ('kb', lb)):
    out += f'; @launch kernel={n}_kernel grid=(256,1,1) block=(256,1,1) lds={l}\n'
out += '.amdgcn_target "amdgcn-amd-amdhsa--gfx950"\n' + ka + kb
dst = [a for a in sys.argv[1:] if not a.startswith('--')][0]
open(dst, 'w').write(out)
```
